```python
import torch

def _softmax(x, axis=-1):
    return torch.softmax(x, dim=axis)
def _gelu(x):
    return torch.nn.functional.gelu(x, approximate="tanh")
def _silu(x):
    return torch.nn.functional.silu(x)
def _sigmoid(x):
    return torch.sigmoid(x)
def _layernorm(x, axis=-1, eps=1e-5):
    m = x.mean(dim=axis, keepdim=True)
    v = x.var(dim=axis, keepdim=True, unbiased=False)
    return (x - m) / torch.sqrt(v + eps)
def _scatter_add(tgt, idx, src, axis=0):
    return tgt.clone().index_add_(axis, idx, src)
def _segment_sum(src, seg, n):
    out = torch.zeros((n,) + src.shape[1:], dtype=src.dtype)
    return out.index_add_(0, seg, src)
def _pad(x, pw):
    flat = tuple(v for pair in reversed(pw) for v in pair)
    return torch.nn.functional.pad(x, flat)

kernel_name = 'parallel_sum__sliding_block__dense_activation_silu__prompt'

def setup_inputs():

    _w = (lambda a: (lambda t: t.to(torch.bfloat16) if t.is_floating_point() else t)(torch.as_tensor(a)))
    def _A_setup():
        B, S, D = 1, 2048, 640
        return {
            "x": _w((lambda *s: torch.randn(*s, dtype=torch.bfloat16) * 0.05)(B, S, D)),
            "wqkv": _w((lambda *s: torch.randn(*s, dtype=torch.bfloat16) * 0.05)(D, 3 * D)),
            "wo": _w((lambda *s: torch.randn(*s, dtype=torch.bfloat16) * 0.05)(D, D)),
        }
    _A_in = _A_setup()

    def _B_setup():
        B, S, D, F = 1, 2048, 640, 1728
        return {
            "x": _w((lambda *s: torch.randn(*s, dtype=torch.bfloat16) * 0.05)(B, S, D)),
            "w1": _w((lambda *s: torch.randn(*s, dtype=torch.bfloat16) * 0.8)(D, F) * (D ** -0.5)),
            "w2": _w((lambda *s: torch.randn(*s, dtype=torch.bfloat16) * 0.8)(F, D) * (F ** -0.5)),
        }
    _B_in = _B_setup()

    return {
        "A_x": _A_in["x"],
        "A_wqkv": _A_in["wqkv"],
        "A_wo": _A_in["wo"],
        "B_x": _B_in["x"],
        "B_w1": _B_in["w1"],
        "B_w2": _B_in["w2"],
    }

def reference(A_x, A_wqkv, A_wo, B_x, B_w1, B_w2):
    def _A_ref(x, wqkv, wo):
        B, S, D = x.shape
        H = 32; Dh = D // H; W = 256
        qkv = (lambda x, *d: x.permute(*d))((x @ wqkv).reshape(B, S, 3, H, Dh), 2, 0, 3, 1, 4)
        q, k, v = qkv[0], qkv[1], qkv[2]
        scores = torch.einsum("bhqd,bhkd->bhqk", q, k) * (Dh ** -0.5)
        idx = torch.arange(S)
        mask = (idx[:, None] - idx[None, :] >= 0) & (idx[:, None] - idx[None, :] < W)
        scores = torch.where(mask[None, None], scores, -1e9)
        p = _softmax(scores, axis=-1)
        o = torch.einsum("bhqk,bhkd->bhqd", p, v)
        return (lambda x, *d: x.permute(*d))(o, 0, 2, 1, 3).reshape(B, S, D) @ wo

    def _B_ref(x, w1, w2):
        h = torch.einsum("bsd,df->bsf", x, w1)
        h = _silu(h)
        out = torch.einsum("bsf,fd->bsd", h, w2)
        return out

    x = A_x
    xn = _layernorm(x, axis=-1)
    return x + _A_ref(xn, A_wqkv, A_wo) + _B_ref(xn, B_w1, B_w2)
```

```python
import re

REG_RE = re.compile(r"^(-|abs\()?([vsa])(?:(\d+)|\[(\d+):(\d+)\])\)?$")


def regs_of(op):
    op = op.strip()
    if op == "vcc":
        return {("s", 106), ("s", 107)}
    if op == "vcc_lo":
        return {("s", 106)}
    if op == "vcc_hi":
        return {("s", 107)}
    if op == "exec":
        return {("s", 126), ("s", 127)}
    if op == "exec_lo":
        return {("s", 126)}
    if op == "exec_hi":
        return {("s", 127)}
    if op == "m0":
        return {("s", 124)}
    m = REG_RE.match(op)
    if not m:
        return set()
    k = m.group(2)
    if m.group(3) is not None:
        return {(k, int(m.group(3)))}
    return {(k, i) for i in range(int(m.group(4)), int(m.group(5)) + 1)}


TRANS = ("v_exp_f32", "v_log_f32", "v_rcp_f32", "v_rsq_f32", "v_sqrt_f32", "v_sin_f32", "v_cos_f32")


class Ins:
    __slots__ = ("text", "op", "kind", "rd", "wr", "srcc", "dpp", "lds_dma", "wide_store_data")

    def __init__(self, text):
        self.text = text
        t = text.split(";")[0].strip()
        self.rd, self.wr, self.srcc = set(), set(), set()
        self.dpp = False
        self.lds_dma = False
        self.wide_store_data = set()
        if t.endswith(":"):
            self.op, self.kind = t, "label"
            return
        if t.startswith(".") or not t:
            self.op, self.kind = t, "dir"
            return
        parts = t.split(None, 1)
        op = self.op = parts[0]
        ops = []
        if len(parts) > 1:
            ops = [o.strip() for o in parts[1].split(",")]
            last = ops[-1].split()
            ops[-1] = last[0] if last else ""
            mods = last[1:]
        else:
            mods = []
        R = [regs_of(o) for o in ops]
        if op.startswith("v_mfma"):
            self.kind = "mfma"
            self.wr = R[0]
            self.rd = R[1] | R[2] | R[3]
            self.srcc = R[3]
        elif op.startswith("v_cmp"):
            self.kind = "valu"
            self.wr = R[0]
            self.rd = set().union(*R[1:])
        elif op.startswith("v_permlane") and "swap" in op:
            self.kind = "valu"
            self.wr = R[0] | R[1]
            self.rd = R[0] | R[1]
        elif op.startswith("v_"):
            self.kind = "valu"
            self.wr = set(R[0])
            self.rd = set().union(*R[1:]) if len(R) > 1 else set()
            if op.startswith(("v_fmac", "v_dot2c", "v_writelane")):
                self.rd |= R[0]
            if "_dpp" in op:
                self.dpp = True
                self.rd |= R[0]
            if "_co_" in op:
                self.wr |= R[1]
        elif op.startswith("buffer_load") or op.startswith("buffer_atomic"):
            self.kind = "vmem"
            if "lds" in mods:
                self.lds_dma = True
                self.rd = set().union(*R) | {("s", 124)}
            else:
                self.wr = R[0]
                self.rd = set().union(*R[1:])
        elif op.startswith("buffer_store"):
            self.kind = "vmem"
            self.rd = set().union(*R)
            if op.endswith("x4") or op.endswith("x3"):
                self.wide_store_data = R[0]
        elif op.startswith("global_store"):
            self.kind = "vmem"
            self.rd = set().union(*R)
        elif op.startswith("global_load"):
            self.kind = "vmem"
            self.wr = R[0]
            self.rd = set().union(*R[1:])
        elif op.startswith("ds_read") or op.startswith("ds_bpermute"):
            self.kind = "ds"
            self.wr = R[0]
            self.rd = set().union(*R[1:])
        elif op.startswith("ds_"):
            self.kind = "ds"
            self.rd = set().union(*R)
        elif op.startswith("s_nop"):
            self.kind = "nop"
        elif op in ("s_waitcnt", "s_barrier", "s_endpgm", "s_sleep", "s_setprio") or op.startswith(("s_cbranch", "s_branch")):
            self.kind = "ctl"
        elif op.startswith("s_cmp") or op.startswith("s_bitcmp"):
            self.kind = "salu"
            self.rd = set().union(*R)
        elif op.startswith("s_"):
            self.kind = "salu"
            self.wr = set(R[0]) if R else set()
            self.rd = set().union(*R[1:]) if len(R) > 1 else set()
            if "saveexec" in op:
                self.wr |= {("s", 126), ("s", 127)}
        else:
            raise ValueError("unknown instruction " + text)

    def states(self):
        if self.kind in ("label", "dir"):
            return 0
        if self.kind == "nop":
            return int(self.text.split(";")[0].split()[1]) + 1
        return 1


def need(p, c):
    n = 0
    vw = {r for r in p.wr if r[0] in "va"}
    sw = {r for r in p.wr if r[0] == "s"}
    if p.kind == "valu":
        if c.kind == "mfma" and vw & c.rd:
            n = max(n, 2)
        if c.kind == "valu":
            if p.op in TRANS and c.op not in TRANS and vw & c.rd:
                n = max(n, 1)
            if c.op.startswith("v_permlane") and vw & c.rd:
                n = max(n, 2)
            if c.dpp and vw & c.rd:
                n = max(n, 2)
            if c.op.startswith(("v_readlane", "v_readfirstlane")) and vw & c.rd:
                n = max(n, 1)
            if sw & c.rd:
                n = max(n, 4 if c.op.startswith(("v_readlane", "v_writelane")) else 2)
        if c.kind == "vmem" and sw & c.rd:
            n = max(n, 5)
        if c.kind == "salu" and sw & c.rd:
            n = max(n, 1)
    if p.kind == "mfma":
        if c.kind == "mfma":
            ab = c.rd - c.srcc if not (c.srcc & (c.rd - c.srcc)) else c.rd
            if p.wr & ab:
                n = max(n, 8)
            if p.wr & c.srcc and p.wr != c.srcc:
                n = max(n, 6)
            if p.wr & c.wr and not (p.wr == c.srcc and c.wr == c.srcc):
                n = max(n, 6)
        elif c.kind in ("valu", "vmem", "ds"):
            if p.wr & (c.rd | c.wr):
                n = max(n, 8)
            if c.kind == "valu" and p.srcc & c.wr:
                n = max(n, 3)
            if c.kind in ("vmem", "ds") and p.srcc & c.wr:
                n = max(n, 3)
    if p.kind == "salu" and ("s", 124) in p.wr and c.lds_dma:
        n = max(n, 1)
    if p.wide_store_data and (p.wide_store_data & c.wr):
        n = max(n, 2)
    return n


def hazard_pass(ins):
    out = []
    added = 0
    for c in ins:
        if c.kind not in ("label", "dir", "nop", "ctl"):
            dist = 0
            lack = 0
            for p in reversed(out):
                if dist >= 8:
                    break
                if p.kind not in ("label", "dir", "nop", "ctl"):
                    lack = max(lack, need(p, c) - dist)
                dist += p.states()
            if lack > 0:
                out.append(Ins(f"s_nop {lack-1}"))
                added += 1
        out.append(c)
    return out, added


class Asm:
    def __init__(self):
        self.ins = []
        self.vm = 0
        self.lg = 0
        self.vm_done = 0
        self.lg_done = 0
        self.fillers = []
        self.nlabel = 0

    def __call__(self, text):
        for line in text.strip().split("\n"):
            line = line.strip()
            if not line:
                continue
            i = Ins(line)
            self.ins.append(i)
            if i.kind == "vmem":
                self.vm += 1
            elif i.kind == "ds":
                self.lg += 1
        return self

    def vm_tok(self):
        return self.vm

    def lg_tok(self):
        return self.lg

    def wait(self, vm=None, lg=None):
        parts = []
        if vm is not None and vm > self.vm_done:
            parts.append(f"vmcnt({min(63, self.vm - vm)})")
            self.vm_done = max(vm, self.vm - 63)
        if lg is not None and lg > self.lg_done:
            parts.append(f"lgkmcnt({min(15, self.lg - lg)})")
            self.lg_done = max(lg, self.lg - 15)
        if parts:
            self("s_waitcnt " + " ".join(parts))

    def wait_all(self, vm=True, lg=True):
        parts = []
        if vm:
            parts.append("vmcnt(0)")
            self.vm_done = self.vm
        if lg:
            parts.append("lgkmcnt(0)")
            self.lg_done = self.lg
        self("s_waitcnt " + " ".join(parts))

    def state(self):
        return (self.vm, self.lg, self.vm_done, self.lg_done)

    def set_state(self, st):
        self.vm, self.lg, self.vm_done, self.lg_done = st

    def add_fill(self, items):
        self.fillers.extend(items)

    def fill(self, n):
        while n > 0 and self.fillers:
            f = self.fillers.pop(0)
            if callable(f):
                cost = f()
                n -= 1 if cost is None else cost
            else:
                self(f)
                n -= 2 if f.split()[0] in TRANS else 1

    def flush(self):
        self.fill(10**9)

    def label(self, name):
        self.ins.append(Ins(name + ":"))

    def new_label(self, base):
        self.nlabel += 1
        return f"L_{base}_{self.nlabel}"

    def text(self):
        ins, added = hazard_pass(self.ins)
        self.nops_added = added
        lines = []
        for i in ins:
            lines.append(i.text if i.kind == "label" else "    " + i.text)
        return "\n".join(lines) + "\n"


def v(a, n=1):
    return f"v{a}" if n == 1 else f"v[{a}:{a+n-1}]"


def s(a, n=1):
    return f"s{a}" if n == 1 else f"s[{a}:{a+n-1}]"
```

```python
import sys, os, struct
sys.path.insert(0, os.path.dirname(os.path.abspath(__file__)))
from asmlib import Asm, v, s

NAME = "parallel_sum__sliding_block__dense_activation_silu__prompt"

FQ, FH, FO, FP = 0x1000, 0x11000, 0x21000, 0x29000
STATS = 0x30000
QKV = 0x40000
ACT = 0x7C0000
WP = 0x1100000
WS_END = 0x13E4000
DIAG = 0x1400000
OOB = 0x80000000
TAGK = 0x9E3779B9

CELL = 16384
KB, KSTR = 49152, 6144
VB, VSTR = 79872, 6272
QB = 111232
MP = 147456
OB = MP + 6144
CS1, CS2A, CS2B = 158208, 158720, 159232
LDS_BYTES = 159744
RSTR, RSZ = 336, 64 * 336

S_X, S_WA, S_W1, S_WS, S_OUT, S_B0, S_B1 = 4, 8, 12, 16, 20, 24, 28
TAG, W, RG, U, RB, CG, HP = 32, 33, 34, 35, 36, 37, 38
W2048, KB1, SXB, SWB, STRA, KB2, SPB = 39, 40, 41, 42, 43, 44, 45
T0, T1, T2, T3, T4, T5 = 46, 47, 48, 49, 50, 51
CT = 52
CT2 = 56
SQ, SHA, SHB = 58, 59, 60
FQA, FHA, FHB = 61, 62, 63
QSC = 64
SPIN = 65
SB0, SB1, SBSTEP = 66, 67, 68
PKO0, PKO1, PKF0, PKF1 = 69, 70, 71, 72
M2, M3, M0L = 74, 76, 78
DBG = 80
HH, CC, RBD, HB = 82, 83, 84, 85
SD_W, SD_A = 86, 87
ROT = 88
LCNT = 89
STAMP = 90

LOG2E = 1.4426950408889634


def fbits(x):
    return "0x%08x" % struct.unpack("<I", struct.pack("<f", x))[0]


class Gen:
    def __init__(self, diag=False, rotmode=1, stop_after=None):
        self.a = Asm()
        self.diag = diag
        self.rotmode = rotmode
        self.stop_after = stop_after
        self.nstamp = 0

    def stamp(self, idx):
        if not self.diag:
            return
        a = self.a
        a("s_waitcnt lgkmcnt(0)")
        a.lg_done = a.lg
        a("s_memrealtime s[100:101]")
        a("s_waitcnt lgkmcnt(0)")
        a(f"s_mov_b32 s{STAMP+idx}, s100")

    def poll(self, addr, dst, code):
        a = self.a
        L, D = a.new_label("poll"), a.new_label("polled")
        a(f"s_mov_b32 s{SPIN}, 0x40000")
        a.label(L)
        a(f"buffer_load_dword {v(dst)}, {v(addr)}, {s(S_WS,4)}, 0 offen sc1")
        a.wait_all(lg=False)
        a(f"v_cmp_ne_u32 vcc, s{TAG}, {v(dst)}")
        a(f"s_cbranch_vccz {D}")
        a("s_sleep 1")
        a(f"s_sub_u32 s{SPIN}, s{SPIN}, 1")
        a(f"s_cbranch_scc0 {L}")
        self.fail(code, dst)
        a.label(D)

    def fail(self, code, tmp):
        a = self.a
        st = a.state()
        a(f"v_mov_b32 {v(tmp)}, {code}")
        a(f"v_mov_b32 v255, 0")
        a(f"global_store_dword v255, {v(tmp)}, {s(DBG,2)}")
        a.set_state(st)

    def flag(self, sreg, tmp):
        a = self.a
        a(f"v_mov_b32 {v(tmp)}, s{TAG}")
        a(f"buffer_store_dword {v(tmp)}, v254, {s(S_WS,4)}, s{sreg} offen sc1")

    def prologue(self):
        a = self.a
        a("s_cmp_ge_u32 s2, 256")
        a("s_cbranch_scc1 L_end")
        a("s_load_dwordx2 s[16:17], s[0:1], 64")
        a("s_load_dwordx2 s[4:5], s[0:1], 0")
        a("s_load_dwordx2 s[8:9], s[0:1], 8")
        a("s_load_dwordx2 s[12:13], s[0:1], 32")
        a("s_load_dwordx2 s[20:21], s[0:1], 48")
        a(f"s_load_dwordx2 {s(DBG,2)}, s[0:1], 56")
        a("s_load_dwordx2 s[92:93], s[0:1], 16")
        a("s_load_dwordx2 s[94:95], s[0:1], 40")
        if self.diag:
            a("s_memrealtime s[100:101]")
        a(f"v_lshrrev_b32 v1, 6, v0")
        a(f"v_and_b32 v0, 63, v0")
        a(f"v_readfirstlane_b32 s{W}, v1")
        a(f"s_and_b32 s{T0}, s2, 7")
        a(f"s_lshr_b32 s{T1}, s2, 3")
        a(f"s_and_b32 s{T2}, s{T0}, 1")
        a(f"s_lshl_b32 s{T2}, s{T2}, 3")
        a(f"s_and_b32 s{T3}, s{T1}, 7")
        a(f"s_add_u32 s{RB}, s{T2}, s{T3}")
        a(f"s_lshr_b32 s{T2}, s{T0}, 1")
        a(f"s_lshr_b32 s{T4}, s{T1}, 3")
        a(f"s_lshl_b32 s{T5}, s{T4}, 2")
        a(f"s_add_u32 s{CG}, s{T2}, s{T5}")
        a(f"s_lshl_b32 s{T5}, s{T2}, 2")
        a(f"s_add_u32 s{HP}, s{T5}, s{T4}")
        if self.rotmode == 0:
            a(f"s_mov_b32 s{ROT}, 0")
        elif self.rotmode == 1:
            a(f"s_mul_i32 s{T5}, s{T4}, 5")
            a(f"s_lshr_b32 s{T5}, s{T5}, 1")
            a(f"s_add_u32 s{ROT}, s{T5}, s{T3}")
            a(f"s_sub_u32 s{T5}, s{ROT}, 10")
            a(f"s_cselect_b32 s{ROT}, s{ROT}, s{T5}")
        a(f"s_and_b32 s{T5}, s{T1}, 3")
        a(f"s_lshl_b32 s{HH}, s{T0}, 2")
        a(f"s_add_u32 s{HH}, s{HH}, s{T5}")
        a(f"s_lshr_b32 s{CC}, s{T1}, 2")
        a(f"s_lshr_b32 s{RBD}, s{HH}, 1")
        a(f"s_and_b32 s{HB}, s{HH}, 1")
        a(f"s_and_b32 s{RG}, s{W}, 3")
        a(f"s_lshr_b32 s{U}, s{W}, 2")
        a(f"s_lshl_b32 s{W2048}, s{W}, 11")
        a("v_and_b32 v1, 15, v0")
        a("v_lshrrev_b32 v2, 4, v0")
        a("v_lshrrev_b32 v3, 3, v0")
        a("v_and_b32 v4, 7, v0")
        a("v_xor_b32 v5, v4, v2")
        a("v_mul_u32_u24 v6, 0x500, v3")
        a("v_lshl_add_u32 v248, v5, 4, v6")
        a("v_xor_b32 v249, 64, v248")
        a(f"v_add_u32 v249, {8*1280-1024}, v249")
        a("v_and_b32 v7, 3, v3")
        a("v_lshrrev_b32 v8, 5, v0")
        a("v_lshl_add_u32 v7, v8, 3, v7")
        a("v_lshlrev_b32 v8, 1, v2")
        a("v_xor_b32 v8, v4, v8")
        a("v_lshlrev_b32 v8, 4, v8")
        a("v_mul_u32_u24 v9, 0xf00, v7")
        a("v_add_u32 v250, v9, v8")
        a("v_mul_u32_u24 v9, 0xd80, v7")
        a("v_add_u32 v251, v9, v8")
        a("v_lshlrev_b32 v10, 4, v0")
        a("v_add_u32 v11, 0x400, v10")
        a(f"v_mov_b32 v12, {hex(OOB)}")
        a("v_cmp_gt_u32 vcc, 16, v0")
        a("v_cndmask_b32 v11, v12, v11, vcc")
        a("v_cmp_eq_u32 vcc, 0, v0")
        a("v_cndmask_b32 v254, v12, v0, vcc")
        a(f"s_lshl_b32 s{T0}, s{RB}, 7")
        a(f"s_lshl_b32 s{T1}, s{CG}, 3")
        a(f"s_add_u32 s{T1}, s{T1}, s{W}")
        a(f"s_add_u32 s{T1}, s{T1}, s{T0}")
        a(f"s_mul_i32 s{T2}, s{T1}, 1280")
        a(f"s_lshl_b32 s{T3}, s{W}, 4")
        a(f"s_add_u32 s{T3}, s{T3}, s{T0}")
        a(f"s_mul_i32 s{SXB}, s{T3}, 1280")
        a(f"s_lshr_b32 s{T3}, s{RG}, 1")
        a(f"s_lshl_b32 s{T3}, s{T3}, 5")
        a(f"s_and_b32 s{T4}, s{RG}, 1")
        a(f"s_lshl_b32 s{T4}, s{T4}, 2")
        a(f"s_add_u32 s{T3}, s{T3}, s{T4}")
        a(f"s_mul_i32 s{SWB}, s{T3}, 3840")
        a(f"s_mul_i32 s{SPB}, s{T3}, 3456")
        a(f"s_lshl_b32 s{T4}, s{CG}, 1")
        a(f"s_add_u32 s{T4}, s{T4}, s{U}")
        a(f"s_lshl_b32 s{T5}, s{T4}, 7")
        a(f"s_add_u32 s{SWB}, s{SWB}, s{T5}")
        a("s_waitcnt lgkmcnt(0)")
        a(f"s_load_dword s{TAG}, s[16:17], 0")
        if self.diag:
            a(f"s_mov_b32 s{STAMP}, s100")
        for base, size in ((S_X, 2048 * 1280), (S_W1, 640 * 3456), (S_OUT, 2048 * 1280),
                           (S_WS, DIAG + 0x100000 if self.diag else WS_END)):
            a(f"s_mov_b32 s{base+2}, {hex(size)}")
            a(f"s_mov_b32 s{base+3}, 0x20000")
        a(f"s_cmp_lt_u32 s{CG}, 15")
        a(f"s_cselect_b32 s{S_WA+2}, {hex(640*3840)}, 0")
        a(f"s_mov_b32 s{S_WA+3}, 0x20000")
        a(f"buffer_load_dwordx4 v[140:143], v10, {s(S_X,4)}, s{T2} offen")
        a(f"buffer_load_dwordx4 v[144:147], v11, {s(S_X,4)}, s{T2} offen")
        self.tok_row = a.vm_tok()
        a(f"s_lshl_b32 s{SD_A}, s{T1}, 4")
        a(f"s_add_u32 s{SD_A}, s{SD_A}, {hex(STATS)}")
        a(f"s_mov_b32 s{KB1}, s{ROT}")
        self.item_tok = {}
        for it in range(9):
            self.issue_item(it)
        a(f"s_mul_i32 s{T0}, s{RB}, 240")
        a(f"s_lshl_b32 s{T1}, s{T4}, 3")
        a(f"s_add_u32 s{T0}, s{T0}, s{T1}")
        a(f"s_lshl_b32 s{T0}, s{T0}, 11")
        a(f"s_add_u32 s{T0}, s{T0}, {hex(QKV)}")
        a(f"s_cmp_lt_u32 s{CG}, 15")
        a(f"s_cselect_b32 s{SQ}, s{T0}, {hex(OOB)}")
        a(f"s_cmp_lt_u32 s{T4}, 10")
        a(f"s_cselect_b32 s{QSC}, {fbits(LOG2E * 20 ** -0.5)}, 1.0")
        a(f"s_lshl_b32 s{T0}, s{RB}, 5")
        a(f"s_add_u32 s{T1}, s{T0}, s{T4}")
        a(f"s_lshl_b32 s{T1}, s{T1}, 7")
        a(f"s_lshl_b32 s{T2}, s{RG}, 2")
        a(f"s_add_u32 s{T1}, s{T1}, s{T2}")
        a(f"s_add_u32 s{FQA}, s{T1}, {hex(FQ)}")
        a(f"s_add_u32 s{T1}, s{T0}, s{CG}")
        a(f"s_lshl_b32 s{T1}, s{T1}, 7")
        a(f"s_lshl_b32 s{T2}, s{W}, 2")
        a(f"s_add_u32 s{T1}, s{T1}, s{T2}")
        a(f"s_add_u32 s{FHA}, s{T1}, {hex(FH)}")
        a(f"s_add_u32 s{FHB}, s{FHA}, {16*128}")
        a(f"s_mul_i32 s{T0}, s{RB}, 296")
        a(f"s_lshl_b32 s{T1}, s{CG}, 3")
        a(f"s_add_u32 s{T0}, s{T0}, s{T1}")
        a(f"s_lshl_b32 s{T0}, s{T0}, 11")
        a(f"s_add_u32 s{SHA}, s{T0}, {hex(ACT)}")
        a(f"s_add_u32 s{SHB}, s{SHA}, {16*8*2048}")
        for t in range(4):
            a(f"s_add_u32 s{T0}, s{RG}, {t}")
            a(f"s_and_b32 s{T0}, s{T0}, 3")
            a(f"s_lshl_b32 s{CT+t}, s{T0}, 6")
        for t in range(2):
            a(f"s_add_u32 s{T0}, s{RG}, {t}")
            a(f"s_and_b32 s{T0}, s{T0}, 1")
            a(f"s_lshl_b32 s{T1}, s{U}, 1")
            a(f"s_add_u32 s{T0}, s{T0}, s{T1}")
            a(f"s_lshl_b32 s{CT2+t}, s{T0}, 6")
        a(f"s_add_u32 s{KB2}, s{ROT}, s{U}")
        a(f"s_cmp_eq_u32 s{KB2}, 10")
        a(f"s_cselect_b32 s{KB2}, 0, s{KB2}")
        a(f"s_lshl_b32 s{T0}, s{CG}, 7")
        a(f"s_add_u32 s{SPB}, s{SPB}, s{T0}")
        self.setup_b_items()
        a("v_lshrrev_b32 v13, 2, v0")
        a("v_and_b32 v13, 3, v13")
        a("v_and_b32 v14, 1, v2")
        a("v_lshl_add_u32 v13, v14, 2, v13")
        a("v_lshrrev_b32 v14, 1, v13")
        a("v_lshlrev_b32 v13, 7, v13")
        a("v_lshrrev_b32 v15, 1, v2")
        a("v_lshl_add_u32 v13, v15, 10, v13")
        a("v_and_b32 v15, 3, v0")
        a("v_lshl_add_u32 v13, v15, 3, v13")
        a(f"s_lshr_b32 s{T3}, s{RG}, 1")
        a(f"s_lshl_b32 s{T0}, s{T3}, 12")
        a(f"s_lshl_b32 s{T1}, s{U}, 13")
        a(f"s_add_u32 s{T0}, s{T0}, s{T1}")
        a(f"v_add_u32 v15, s{T0}, v13")
        for t in range(4):
            a(f"s_lshr_b32 s{T1}, s{CT+t}, 6")
            a(f"v_xor_b32 v16, s{T1}, v14")
            a(f"v_lshl_add_u32 v{242+t}, v16, 5, v15")
        a("v_lshl_add_u32 v239, v14, 16, v13")
        a("v_lshrrev_b32 v15, 1, v1")
        a("v_xor_b32 v15, v15, v2")
        a("v_lshlrev_b32 v15, 4, v15")
        a("v_lshl_add_u32 v15, v1, 7, v15")
        a(f"s_lshl_b32 s{T0}, s{RG}, 12")
        a(f"v_add_u32 v15, s{T0}, v15")
        a(f"s_lshl_b32 s{T0}, s{T3}, 6")
        a(f"v_xor_b32 v246, s{T0}, v15")
        a("v_xor_b32 v247, 64, v246")
        a("v_lshrrev_b32 v15, 1, v2")
        a("v_lshlrev_b32 v15, 11, v15")
        a("v_and_b32 v16, 31, v0")
        a("v_lshl_add_u32 v15, v16, 4, v15")
        a(f"s_lshl_b32 s{T0}, s{RG}, 9")
        a(f"v_add_u32 v252, s{T0}, v15")
        a("v_lshlrev_b32 v253, 4, v2")
        for r in range(228, 232):
            a(f"v_mov_b32 v{r}, 0x3f803f80")
        a(f"s_lshl_b32 s{T0}, s{W}, 6")
        a(f"v_add_u32 v15, s{T0}, v0")
        a(f"s_lshl_b32 s{T0}, s{RB}, 7")
        a(f"v_add_u32 v16, s{T0}, v15")
        a("v_mov_b32 v17, 0xf149")
        a("v_cmp_gt_u32 vcc, 0x100, v16")
        a("v_cndmask_b32 v20, 0, v17, vcc")
        a("v_mov_b32 v21, 0")
        a("v_mov_b32 v22, 0")
        a("v_mov_b32 v23, 0")
        a(f"v_cmp_gt_u32 vcc, 0x180, v15")
        a(f"v_lshlrev_b32 v16, 4, v15")
        a(f"v_add_u32 v16, {MP}, v16")
        a(f"s_mov_b64 exec, vcc")
        a("ds_write_b128 v16, v[20:23]")
        a("s_mov_b64 exec, -1")
        a(f"v_cmp_gt_u32 vcc, 18, v15")
        a(f"v_lshlrev_b32 v16, 8, v15")
        a(f"v_add_u32 v16, {OB}, v16")
        a(f"s_mov_b64 exec, vcc")
        a("ds_write_b64 v16, v[228:229]")
        a("s_mov_b64 exec, -1")
        a.wait(vm=self.tok_row)
        for i in range(8):
            a(f"v_lshlrev_b32 v{100+2*i}, 16, v{140+i}")
            a(f"v_and_b32 v{101+2*i}, 0xffff0000, v{140+i}")
        for i in range(8):
            a(f"v_add_f32 v{120+i}, v{100+2*i}, v{101+2*i}")
        for i in range(4):
            a(f"v_add_f32 v{120+i}, v{120+i}, v{124+i}")
        a("v_add_f32 v120, v120, v121")
        a("v_add_f32 v122, v122, v123")
        a("v_add_f32 v120, v120, v122")
        self.wave_sum(120)
        a(f"v_readlane_b32 s{T0}, v120, 63")
        a(f"v_mov_b32 v121, {fbits(1/640)}")
        a(f"v_mul_f32 v121, s{T0}, v121")
        for i in range(16):
            a(f"v_sub_f32 v{100+i}, v{100+i}, v121")
        a("v_mul_f32 v122, v100, v100")
        a("v_mul_f32 v123, v108, v108")
        for i in range(1, 8):
            a(f"v_fmac_f32 v122, v{100+i}, v{100+i}")
            a(f"v_fmac_f32 v123, v{108+i}, v{108+i}")
        a("v_cmp_gt_u32 vcc, 16, v0")
        a("v_cndmask_b32 v123, 0, v123, vcc")
        a("v_add_f32 v120, v122, v123")
        self.wave_sum(120)
        a(f"v_readlane_b32 s{T0}, v120, 63")
        a(f"v_mov_b32 v122, {fbits(1/640)}")
        a(f"v_mul_f32 v122, s{T0}, v122")
        a("v_cvt_pk_bf16_f32 v124, v121, v122")
        a("v_and_b32 v125, 0xffff0000, v124")
        a("v_lshlrev_b32 v124, 16, v124")
        a(f"v_add_f32 v125, {fbits(1e-5)}, v125")
        a("v_cvt_pk_bf16_f32 v125, v125, v125")
        a("v_lshlrev_b32 v125, 16, v125")
        a("v_sqrt_f32 v125, v125")
        a("v_cvt_pk_bf16_f32 v125, v125, v125")
        a("v_lshlrev_b32 v125, 16, v125")
        a.wait_all(vm=False)
        a(f"s_add_u32 s{TAG}, s{TAG}, {hex(TAGK)}")
        a(f"v_mov_b32 v126, s{TAG}")
        a(f"v_mov_b32 v127, s{TAG}")
        a(f"buffer_store_dwordx4 v[124:127], v254, {s(S_WS,4)}, s{SD_A} offen sc1")
        self.stamp(1)

    def wave_sum(self, r):
        a = self.a
        for sh in (1, 2, 4, 8):
            a(f"v_add_f32_dpp v{r}, v{r}, v{r} row_shr:{sh} row_mask:0xf bank_mask:0xf bound_ctrl:1")
        a(f"v_add_f32_dpp v{r}, v{r}, v{r} row_bcast:15 row_mask:0xa bank_mask:0xf")
        a(f"v_add_f32_dpp v{r}, v{r}, v{r} row_bcast:31 row_mask:0xc bank_mask:0xf")

    def setup_b_items(self):
        a = self.a
        L3, LD = a.new_label("bpack"), a.new_label("bdone")
        a(f"s_mov_b32 s{S_B0+3}, 0x20000")
        a(f"s_mov_b32 s{S_B1+3}, 0x20000")
        a(f"s_cmp_ge_u32 s{CG}, 11")
        a(f"s_cbranch_scc1 {L3}")
        for b in (S_B0, S_B1):
            a(f"s_mov_b32 s{b}, s{S_W1}")
            a(f"s_mov_b32 s{b+1}, s{S_W1+1}")
            a(f"s_mov_b32 s{b+2}, s{S_W1+2}")
        a("v_mov_b32 v241, v251")
        a(f"s_mov_b32 s{SB0}, 0")
        a(f"s_mov_b32 s{SB1}, 0")
        a(f"s_mov_b32 s{PKO0}, {hex(OOB)}")
        a(f"s_mov_b32 s{PKO1}, {hex(OOB)}")
        a(f"s_mov_b32 s{PKF0}, {hex(OOB)}")
        a(f"s_mov_b32 s{PKF1}, {hex(OOB)}")
        a(f"s_branch {LD}")
        a.label(L3)
        a("v_mul_u32_u24 v9, 0x500, v7")
        a("v_add_u32 v241, v9, v8")
        a(f"s_sub_u32 s{T0}, s{CG}, 11")
        a(f"s_lshl_b32 s{T0}, s{T0}, 4")
        a(f"s_add_u32 s{T0}, s{T0}, s{RB}")
        a(f"s_lshl_b32 s{T0}, s{T0}, 3")
        a(f"s_add_u32 s{T0}, s{T0}, s{W}")
        for b, sb, pko, pkf in ((S_B0, SB0, PKO0, PKF0), (S_B1, SB1, PKO1, PKF1)):
            a(f"s_mul_i32 s{T1}, s{T0}, 886")
            a(f"s_lshr_b32 s{T1}, s{T1}, 16")
            a(f"s_mul_i32 s{T2}, s{T1}, 74")
            a(f"s_sub_u32 s{T2}, s{T0}, s{T2}")
            a(f"s_mul_i32 s{T3}, s{T2}, 40")
            a(f"s_lshl_b32 s{T5}, s{T1}, 2")
            a(f"s_add_u32 s{T3}, s{T3}, s{T5}")
            a(f"s_lshl_b32 s{T3}, s{T3}, 10")
            a(f"s_add_u32 s{pko}, s{T3}, {hex(WP)}")
            a(f"s_lshr_b32 s{T3}, s{T0}, 3")
            a(f"s_lshl_b32 s{T3}, s{T3}, 7")
            a(f"s_and_b32 s{T5}, s{T0}, 7")
            a(f"s_lshl_b32 s{T5}, s{T5}, 2")
            a(f"s_add_u32 s{T3}, s{T3}, s{T5}")
            a(f"s_add_u32 s{pkf}, s{T3}, {hex(FP)}")
            a(f"s_sub_u32 s{T3}, s{T2}, 54")
            a(f"s_cselect_b32 s{T2}, s{T2}, s{T3}")
            a(f"s_cselect_b32 s{b}, s94, s92")
            a(f"s_cselect_b32 s{b+1}, s95, s93")
            a(f"s_mov_b32 s{b+2}, {hex(640*1280)}")
            a(f"s_cselect_b32 s{b+2}, {hex(1728*1280)}, s{b+2}")
            a(f"s_mul_i32 s{T2}, s{T2}, {32*1280}")
            a(f"s_lshl_b32 s{T1}, s{T1}, 7")
            a(f"s_add_u32 s{sb}, s{T2}, s{T1}")
            if b == S_B0:
                a(f"s_add_u32 s{T0}, s{T0}, 640")
        a(f"s_cmp_lt_u32 s{T0}, 740")
        a(f"s_cselect_b32 s{SB1}, s{SB1}, {hex(OOB)}")
        a(f"s_cselect_b32 s{PKO1}, s{PKO1}, {hex(OOB)}")
        a(f"s_cselect_b32 s{PKF1}, s{PKF1}, {hex(OOB)}")
        a.label(LD)

    def item_ops(self, it):
        cell = it % 9
        ops = []
        if it < 20 and it % 2 == 0:
            ops += [f"s_add_u32 m0, s{W2048}, {cell*CELL}",
                    f"s_lshl_b32 s{T0}, s{KB1}, 7",
                    f"s_add_u32 s{T0}, s{T0}, s{SXB}",
                    f"buffer_load_dwordx4 v248, {s(S_X,4)}, s{T0} offen lds",
                    f"buffer_load_dwordx4 v249, {s(S_X,4)}, s{T0} offen offset:1024 lds"]
        elif it < 20:
            ops += [f"s_mul_i32 s{T0}, s{KB1}, {64*3840}",
                    f"s_add_u32 s{T0}, s{T0}, s{SWB}",
                    f"s_add_u32 s{T1}, s{T0}, {16*3840-1024}",
                    f"s_add_u32 m0, s{W2048}, {cell*CELL}",
                    f"s_add_u32 s{KB1}, s{KB1}, 1",
                    f"buffer_load_dwordx4 v250, {s(S_WA,4)}, s{T0} offen lds",
                    f"buffer_load_dwordx4 v250, {s(S_WA,4)}, s{T1} offen offset:1024 lds",
                    (f"s_cmp_eq_u32 s{KB1}, 10", f"s_cselect_b32 s{KB1}, 0, s{KB1}")]
        elif it < 25:
            ops += [f"s_mul_i32 s{T0}, s{KB2}, {64*3456}",
                    f"s_add_u32 s{T0}, s{T0}, s{SPB}",
                    f"s_add_u32 s{T1}, s{T0}, {16*3456-1024}",
                    f"s_add_u32 m0, s{W2048}, {cell*CELL}",
                    f"s_add_u32 s{KB2}, s{KB2}, 2",
                    f"buffer_load_dwordx4 v251, {s(S_W1,4)}, s{T0} offen lds",
                    f"buffer_load_dwordx4 v251, {s(S_W1,4)}, s{T1} offen offset:1024 lds",
                    (f"s_sub_u32 s{T0}, s{KB2}, 10", f"s_cselect_b32 s{KB2}, s{KB2}, s{T0}")]
        else:
            m = it - 25
            srd = S_B0 if m < 2 else S_B1
            pk = (f"s{SB0}" if m < 2 else f"s{SB1}") if m < 4 else None
            ops += [f"s_mul_i32 s{T0}, s{KB2}, {64*3456}",
                    f"s_add_u32 s{T0}, s{T0}, s{SPB}",
                    f"s_add_u32 s{T0}, s{T0}, {16*128}"]
            if pk:
                ops += [f"s_add_u32 s{T2}, {pk}, {(m & 1) * 4 * 1280}"]
            else:
                ops += [f"s_mov_b32 s{T2}, {hex(OOB)}"]
            ops += [f"s_mov_b32 s{T1}, {16*1280-1024}",
                    (f"s_cmp_lt_u32 s{CG}, 11", f"s_cselect_b32 s{T0}, s{T0}, s{T2}",
                     f"s_cselect_b32 s{T1}, {16*3456-1024}, s{T1}"),
                    f"s_add_u32 s{T1}, s{T1}, s{T0}",
                    f"s_add_u32 m0, s{W2048}, {cell*CELL}",
                    f"s_add_u32 s{KB2}, s{KB2}, 2",
                    f"buffer_load_dwordx4 v{self.VB_OFF}, {s(srd,4)}, s{T0} offen lds",
                    f"buffer_load_dwordx4 v{self.VB_OFF}, {s(srd,4)}, s{T1} offen offset:1024 lds",
                    (f"s_sub_u32 s{T0}, s{KB2}, 10", f"s_cselect_b32 s{KB2}, s{KB2}, s{T0}")]
        res = []
        a = self.a
        for o in ops:
            if isinstance(o, tuple):
                res.append(lambda o=o: [a(x) for x in o] and len(o))
            else:
                res.append(o)

        def note():
            self.item_tok[it] = a.vm_tok()
            return 0
        res.append(note)
        return res

    def issue_item(self, it):
        for o in self.item_ops(it):
            if callable(o):
                o()
            else:
                self.a(o)

    VB_OFF = 241

    def xreg(self, st, ks, tt):
        return ((st * 2 + ks) * 2 + tt) * 4

    def bump(self, regs, old, new):
        if old != new:
            for r in regs:
                self.a(f"v_add_u32 v{r}, {hex(((new - old) * 65536) & 0xffffffff)}, v{r}")

    def p1_mfmas(self, st, ks, tiles=(0, 1, 2, 3), cs=True, nfill=3):
        a = self.a
        wb = 192 + 16 * ks
        first = st == 0 and ks == 0
        for t in tiles:
            if t == 0 and cs:
                c = "0" if first else v(224, 4)
                a(f"v_mfma_f32_16x16x32_bf16 {v(224,4)}, {v(wb,4)}, {v(228,4)}, {c}")
                a.fill(nfill)
            for tt in range(2):
                d = 160 + (t * 2 + tt) * 4
                c = "0" if first else v(d, 4)
                a(f"v_mfma_f32_16x16x32_bf16 {v(d,4)}, {v(wb+4*t,4)}, {v(self.xreg(st,ks,tt),4)}, {c}")
                a.fill(nfill)

    def p1(self):
        a = self.a
        wwin, xwin = 0, 0
        TR = [242, 243, 244, 245]
        for st in range(10):
            cx, cw = (2 * st) % 9, (2 * st + 1) % 9
            self.bump(TR, wwin, cw >> 2); wwin = cw >> 2
            self.bump([246, 247], xwin, cx >> 2); xwin = cx >> 2
            a.wait(vm=self.item_tok[2 * st + 1], lg=a.lg_tok())
            a("s_barrier")
            if st == 0:
                self.stamp(2)
            ow, ox = (cw & 3) * CELL, (cx & 3) * CELL
            a(f"ds_read_b128 {v(self.xreg(st,0,0),4)}, v246 offset:{ox}")
            a(f"ds_read_b128 {v(self.xreg(st,0,1),4)}, v246 offset:{ox+2048}")
            for t in range(4):
                for hh in range(2):
                    a(f"ds_read_b64_tr_b16 {v(192+4*t+2*hh,2)}, v{TR[t]} offset:{ow+hh*2048}")
            tok0 = a.lg_tok()
            a(f"ds_read_b128 {v(self.xreg(st,1,0),4)}, v247 offset:{ox}")
            a(f"ds_read_b128 {v(self.xreg(st,1,1),4)}, v247 offset:{ox+2048}")
            a.add_fill([f"v_xor_b32 v{r}, 0x1000, v{r}" for r in TR])
            if st == 7:
                def stats_load():
                    a(f"s_lshl_b32 s{T0}, s{RB}, 2")
                    a(f"s_add_u32 s{T0}, s{T0}, s{RG}")
                    a(f"s_lshl_b32 s{T0}, s{T0}, 9")
                    a(f"s_add_u32 s{SD_A}, s{T0}, {hex(STATS)}")
                    a("v_and_b32 v255, 0xf0, v252")
                    a(f"buffer_load_dwordx3 v[232:234], v255, {s(S_WS,4)}, s{SD_A} offen sc1")
                    a(f"buffer_load_dwordx3 v[236:238], v255, {s(S_WS,4)}, s{SD_A} offen offset:256 sc1")
                    self.tok_stats = a.vm_tok()
                    return 7
                a.add_fill([stats_load])
            if st >= 1:
                for it in (2 * st + 7, 2 * st + 8):
                    a.add_fill(self.item_ops(it))
                self.p1_mfmas(st - 1, 1)
            a.flush()
            a.wait(lg=tok0)
            for t in range(4):
                for hh in range(2):
                    a(f"ds_read_b64_tr_b16 {v(208+4*t+2*hh,2)}, v{TR[t]} offset:{ow+hh*2048}")
            if st < 9:
                a.add_fill([f"v_xor_b32 v{r}, 0x1000, v{r}" for r in TR])
            self.p1_mfmas(st, 0)
            a.flush()
        a.wait(lg=a.lg_tok())
        self.p1_mfmas(9, 1, tiles=(0, 1))
        a("v_and_b32 v246, 0xffff, v239")
        a("v_lshrrev_b32 v247, 16, v239")
        a(f"s_lshr_b32 s{T0}, s{RG}, 1")
        a(f"s_lshl_b32 s{T0}, s{T0}, 12")
        a(f"v_add_u32 v246, s{T0}, v246")
        for t in range(2):
            a(f"s_lshr_b32 s{T1}, s{CT2+t}, 6")
            a(f"v_xor_b32 v255, s{T1}, v247")
            a(f"v_lshl_add_u32 v{242+t}, v255, 5, v246")
            a(f"v_xor_b32 v{244+t}, 0x1000, v{242+t}")
        a(f"s_lshl_b32 s{T0}, s{U}, 8")
        a(f"s_add_u32 s{T0}, s{T0}, s{CT}")
        self.cs_write(T0, CS1)
        self.p2win = 0

    def cs_write(self, soff, base):
        a = self.a
        a(f"v_add_u32 v255, s{soff}, v253")
        a("s_mov_b32 exec_lo, 0x00010001")
        a("s_mov_b32 exec_hi, 0x00010001")
        a(f"v_add_u32 v255, {base}, v255")
        a("ds_write_b128 v255, v[224:227]")
        a("s_mov_b64 exec, -1")

    def stats_check(self):
        a = self.a
        L, D, F = a.new_label("st"), a.new_label("stok"), a.new_label("stf")
        a.wait(vm=self.tok_stats)
        a(f"v_cmp_ne_u32 vcc, s{TAG}, v234")
        a(f"v_cmp_ne_u32 {s(M2,2)}, s{TAG}, v238")
        a(f"s_or_b64 vcc, vcc, {s(M2,2)}")
        a(f"s_cbranch_vccz {D}")
        st = a.state()
        a(f"s_mov_b32 s{SPIN}, 0x40000")
        a("v_and_b32 v255, 0xf0, v252")
        a.label(L)
        a(f"buffer_load_dwordx3 v[232:234], v255, {s(S_WS,4)}, s{SD_A} offen sc1")
        a(f"buffer_load_dwordx3 v[236:238], v255, {s(S_WS,4)}, s{SD_A} offen offset:256 sc1")
        a("s_waitcnt vmcnt(0)")
        a(f"v_cmp_ne_u32 vcc, s{TAG}, v234")
        a(f"v_cmp_ne_u32 {s(M2,2)}, s{TAG}, v238")
        a(f"s_or_b64 vcc, vcc, {s(M2,2)}")
        a(f"s_cbranch_vccz {D}")
        a(f"s_sub_u32 s{SPIN}, s{SPIN}, 1")
        a(f"s_cbranch_scc0 {L}")
        self.fail(1, 235)
        a.set_state(st)
        a.label(D)
        a("v_rcp_f32 v234, v233")
        a("v_rcp_f32 v238, v237")
        a(f"v_mul_f32 v234, s{QSC}, v234")
        a(f"v_mul_f32 v238, s{QSC}, v238")

    def e1_ops(self):
        a = self.a
        ops = []
        CSR = 246
        for t in range(4):
            b = 160 + 8 * t

            def rd(t=t):
                a(f"s_lshl_b32 s{T3}, s{U}, 8")
                a(f"s_add_u32 s{T3}, s{T3}, s{CT+t}")
                a(f"s_add_u32 s{T3}, s{T3}, {CS1}")
                a(f"v_add_u32 v255, s{T3}, v253")
                a(f"ds_read_b128 {v(CSR,4)}, v255")
                self.tok_cs = a.lg_tok()
                return 2
            ops.append(rd)
            ops.append(f"s_lshl_b32 s{T4}, s{CT+t}, 6")
            ops.append(f"s_add_u32 s{T4}, s{T4}, s{SQ}")
            ops.append(lambda: a.wait(lg=self.tok_cs) or 4)
            for tt in range(2):
                for r in range(4):
                    ops.append(f"v_fma_f32 v{b+4*tt+r}, -v{232+4*tt}, v{CSR+r}, v{b+4*tt+r}")
            for tt in range(2):
                for r in range(4):
                    ops.append(f"v_mul_f32 v{b+4*tt+r}, v{b+4*tt+r}, v{234+4*tt}")
            ops += self.pack_store(b, T4)
        ops.append(lambda: setattr(self, "tok_q", a.vm_tok()) or 0)
        return ops

    def pack_store(self, b, soff):
        ops = [f"v_cvt_pk_bf16_f32 v{b+i}, v{b+2*i}, v{b+2*i+1}" for i in range(4)]
        ops += [f"s_nop 0", f"v_permlane16_swap_b32 v{b}, v{b+2}", f"v_permlane16_swap_b32 v{b+1}, v{b+3}"]
        ops.append(f"buffer_store_dwordx4 {v(b,4)}, v252, {s(S_WS,4)}, s{soff} offen sc1")
        return ops

    def e2_ops(self, acc, csbase, sbase, tmp, tokname):
        a = self.a
        ops = []
        c0, c1, z = tmp, tmp + 4, tmp + 8
        for t in range(2):
            b = acc + 8 * t

            def rd(t=t):
                a(f"s_add_u32 s{T3}, s{CT2+t}, {csbase}")
                a(f"v_add_u32 v255, s{T3}, v253")
                a(f"ds_read_b128 {v(c0,4)}, v255")
                a(f"ds_read_b128 {v(c1,4)}, v255 offset:256")
                self.tok_cs = a.lg_tok()
                return 3
            ops.append(rd)
            ops.append(f"s_lshl_b32 s{T4}, s{CT2+t}, 6")
            ops.append(f"s_add_u32 s{T4}, s{T4}, s{sbase}")
            ops.append(lambda: a.wait(lg=self.tok_cs) or 4)
            ops += [f"v_add_f32 v{c0+r}, v{c0+r}, v{c1+r}" for r in range(4)]
            for tt in range(2):
                x = b + 4 * tt
                ops += [f"v_fma_f32 v{x+r}, -v{232+4*tt}, v{c0+r}, v{x+r}" for r in range(4)]
                ops += [f"v_mul_f32 v{z+r}, v{x+r}, v{234+4*tt}" for r in range(4)]
                ops += [f"v_exp_f32 v{z+r}, v{z+r}" for r in range(4)]
                ops += [f"v_fma_f32 v{z+r}, v{z+r}, v{233+4*tt}, v{233+4*tt}" for r in range(4)]
                ops += [f"v_rcp_f32 v{z+r}, v{z+r}" for r in range(4)]
                ops += [f"v_mul_f32 v{x+r}, v{x+r}, v{z+r}" for r in range(4)]
            ops += self.pack_store(b, T4)
        ops.append(lambda: setattr(self, tokname, a.vm_tok()) or 0)
        return ops

    def silu_scale_ops(self):
        return ["v_rcp_f32 v234, v233", "v_rcp_f32 v238, v237",
                f"v_mul_f32 v234, {fbits(-LOG2E)}, v234", f"v_mul_f32 v238, {fbits(-LOG2E)}, v238"]

    def p2_reads(self, it, q):
        a = self.a
        off = ((it % 9) & 3) * CELL + (q >> 1) * 8192
        for t in range(2):
            for hh in range(2):
                a(f"ds_read_b64_tr_b16 {v(192+8*(q&1)+4*t+2*hh,2)}, v{242+2*(q&1)+t} offset:{off+hh*2048}")
        return a.lg_tok()

    def p2_mfmas(self, m, q, acc, nfill):
        a = self.a
        wb = 192 + 8 * (q & 1)
        first = m == 0 and q == 0
        st, ks = 2 * m + (q >> 1), q & 1
        for t in range(2):
            if t == 0 and ks == 0:
                c = "0" if first else v(224, 4)
                a(f"v_mfma_f32_16x16x32_bf16 {v(224,4)}, {v(wb,4)}, {v(228,4)}, {c}")
                a.fill(nfill)
            for tt in range(2):
                d = acc + (t * 2 + tt) * 4
                c = "0" if first else v(d, 4)
                a(f"v_mfma_f32_16x16x32_bf16 {v(d,4)}, {v(wb+4*t,4)}, {v(self.xreg(st,ks,tt),4)}, {c}")
                a.fill(nfill)

    def p2_step_head(self, it):
        a = self.a
        win = (it % 9) >> 2
        self.bump([242, 243, 244, 245], self.p2win, win)
        self.p2win = win
        a.wait(vm=self.item_tok[it], lg=a.lg_tok())
        a("s_barrier")

    def p2_pass(self, it0, acc, pre, hooks, csbase, nfill=2):
        a = self.a
        for m in range(5):
            it = it0 + m
            if m > 0:
                self.p2_step_head(it)
            tok = self.p2_reads(it, 0)
            if m == 0:
                pre()
            else:
                self.p2_mfmas(m - 1, 3, acc, nfill)
            for q in range(3):
                a.wait(lg=tok)
                tok = self.p2_reads(it, q + 1)
                if (m, q) in hooks:
                    hooks[(m, q)]()
                self.p2_mfmas(m, q, acc, nfill)
        a.flush()
        a(f"s_lshr_b32 s{T0}, s{RG}, 1")
        a(f"s_lshl_b32 s{T0}, s{T0}, 8")
        a(f"s_add_u32 s{T0}, s{T0}, s{CT2}")
        self.cs_write(T0, csbase)

    def p2a(self):
        a = self.a
        self.p2_step_head(20)
        self.stamp(3)

        def pre():
            self.p1_mfmas(9, 1, tiles=(2, 3), cs=False)
            self.issue_item(27)
            self.issue_item(28)
            self.stats_check()
            a.add_fill(self.e1_ops())

        def h10():
            self.issue_item(29)

        def h40():
            a.flush()
            a.wait(vm=self.tok_q)
            self.flag(FQA, 255)
        self.p2_pass(20, 208, pre, {(1, 0): h10, (4, 1): h40}, CS2A)

    def p2b(self):
        a = self.a

        def pre():
            self.p2_mfmas(4, 3, 208, 0)
            a.add_fill(self.silu_scale_ops())
            a.add_fill(self.e2_ops(208, CS2A, SHA, 176, "tok_h"))

        def h41():
            a.flush()
            a.wait(vm=self.tok_h)
            self.flag(FHA, 255)
        self.p2_pass(25, 160, pre, {(4, 1): h41}, CS2B)

    def pack_jobs(self):
        a = self.a
        a("v_and_b32 v246, 0xffff, v239")
        a("v_lshrrev_b32 v247, 16, v239")
        a(f"v_add_u32 v246, s{W2048}, v246")
        for ct in range(4):
            a(f"v_xor_b32 v255, {ct}, v247")
            a(f"v_lshl_add_u32 v{160+ct}, v255, 5, v246")
            a(f"v_add_u32 v{164+ct}, {7*CELL}, v{160+ct}")
        a("v_mbcnt_lo_u32_b32 v168, -1, 0")
        a("v_mbcnt_hi_u32_b32 v168, -1, v168")
        a("v_lshlrev_b32 v168, 4, v168")
        a.wait(vm=self.item_tok[28])
        for job in range(2):
            for ct in range(4):
                for hh in range(2):
                    adr = (164 if job == 0 else 160) + ct
                    a(f"ds_read_b64_tr_b16 {v(job*16+4*ct+2*hh,2)}, v{adr} offset:{hh*CELL}")
        for job in range(2):
            a.wait(lg=a.lg_tok() - 8 * (1 - job))
            for ct in range(4):
                a(f"buffer_store_dwordx4 {v(job*16+4*ct,4)}, v168, {s(S_WS,4)}, s{PKO0+job} offen offset:{ct*1024} sc1")
        self.tok_p = a.vm_tok()

    def gather(self):
        a = self.a
        L = a.new_label("nogather")
        a(f"s_cmp_eq_u32 s{W}, 7")
        a(f"s_cbranch_scc1 {L}")
        a(f"s_add_u32 s{T0}, s{W}, 2")
        a(f"s_mul_i32 s{T0}, s{T0}, 86")
        a(f"s_lshr_b32 s{T0}, s{T0}, 8")
        a(f"s_mul_i32 s{T1}, s{T0}, 3")
        a(f"s_sub_u32 s{T1}, s{W}, s{T1}")
        a(f"s_add_u32 s{T1}, s{T1}, 2")
        a(f"s_add_u32 s{T2}, s{RB}, s{T1}")
        a(f"s_sub_u32 s{T2}, s{T2}, 2")
        a(f"s_cselect_b32 s{T3}, 1, 0")
        a(f"s_cselect_b32 s{T2}, s{RB}, s{T2}")
        a("v_mbcnt_lo_u32_b32 v246, -1, 0")
        a("v_mbcnt_hi_u32_b32 v246, -1, v246")
        a(f"s_mul_i32 s{T4}, s{HP}, 5")
        a("v_and_b32 v247, 4, v246")
        a(f"v_add_u32 v247, s{T4}, v247")
        a("v_lshrrev_b32 v247, 3, v247")
        a(f"s_mul_i32 s{T5}, s{T0}, 10")
        a(f"s_lshl_b32 s{SPIN}, s{T2}, 5")
        a(f"s_add_u32 s{T5}, s{T5}, s{SPIN}")
        a(f"v_add_u32 v247, s{T5}, v247")
        a("v_lshlrev_b32 v247, 7, v247")
        a("v_and_b32 v255, 3, v246")
        a("v_lshl_add_u32 v247, v255, 2, v247")
        a(f"v_add_u32 v247, {hex(FQ)}, v247")
        a("v_lshlrev_b32 v246, 4, v246")
        a(f"s_mul_i32 s{T5}, s{T2}, 240")
        a(f"s_add_u32 s{T4}, s{T4}, s{T5}")
        a(f"s_mul_i32 s{T5}, s{T0}, 80")
        a(f"s_add_u32 s{T4}, s{T4}, s{T5}")
        a(f"s_lshl_b32 s{T4}, s{T4}, 11")
        a(f"s_add_u32 s{T4}, s{T4}, {hex(QKV)}")
        a(f"s_cmp_eq_u32 s{T3}, 1")
        a(f"s_cselect_b32 s{T4}, {hex(OOB)}, s{T4}")
        a(f"s_lshl_b32 s{T1}, s{T1}, 11")
        a(f"s_mov_b32 s{T2}, {VB}")
        a(f"s_mov_b32 s{T3}, {VSTR}")
        a(f"s_cmp_eq_u32 s{T0}, 1")
        a(f"s_cselect_b32 s{T2}, {KB}, s{T2}")
        a(f"s_cselect_b32 s{T3}, {KSTR}, s{T3}")
        a(f"s_add_u32 s{T2}, s{T2}, s{T1}")
        a(f"s_cmp_eq_u32 s{T0}, 0")
        a(f"s_cselect_b32 s{T2}, {QB}, s{T2}")
        a(f"s_cselect_b32 s{T3}, 2048, s{T3}")
        self.poll(247, 255, 2)
        for o in range(5):
            a(f"s_mov_b32 m0, s{T2}")
            a(f"s_add_u32 s{T2}, s{T2}, s{T3}")
            a(f"buffer_load_dwordx4 v246, {s(S_WS,4)}, s{T4} offen sc1 lds")
            a(f"buffer_load_dwordx4 v246, {s(S_WS,4)}, s{T4} offen offset:1024 sc1 lds")
            a(f"s_add_u32 s{T4}, s{T4}, 2048")
        a.label(L)
        self.tok_g = a.vm_tok()

    def attention(self):
        a = self.a
        S = lambda T, t: (0 if T == 0 else 64) + 4 * t
        KF, VF, OX, OY, YK, QF, CD, CO, MX = 136, 148, 164, 172, 180, 184, 200, 204, 208
        KA, VX, VY, QA, STX, STZ = 214, 216, 218, 220, 221, 222
        t0, t1, t2, t3 = 224, 225, 226, 227
        a("s_setprio 1")
        a(f"v_mbcnt_lo_u32_b32 v{t0}, -1, 0")
        a(f"v_mbcnt_hi_u32_b32 v{t0}, -1, v{t0}")
        a(f"v_lshrrev_b32 v{t1}, 4, v{t0}")
        a(f"v_and_b32 v{t2}, 15, v{t0}")
        a(f"v_cmp_eq_u32 {s(M2,2)}, 2, v{t1}")
        a(f"v_cmp_eq_u32 {s(M3,2)}, 3, v{t1}")
        a(f"v_cmp_eq_u32 {s(M0L,2)}, 0, v{t1}")
        a(f"s_lshl_b32 s{T0}, s{W}, 9")
        a(f"v_lshl_add_u32 v{t3}, v{t2}, 4, s{T0}")
        a(f"v_min_u32 v228, 2, v{t1}")
        a(f"v_lshl_add_u32 v{QA}, v228, 11, v{t3}")
        a(f"v_add_u32 v{QA}, {QB}, v{QA}")
        a(f"ds_read_b128 {v(QF,4)}, v{QA}")
        a(f"ds_read_b128 {v(QF+4,4)}, v{QA} offset:256")
        a(f"v_mov_b32 v229, {3*2048}")
        a(f"v_cmp_gt_u32 vcc, 2, v{t1}")
        a(f"v_cndmask_b32 v229, 0, v229, vcc")
        a(f"v_add_u32 v{QA}, v{QA}, v229")
        a(f"ds_read_b128 {v(QF+8,4)}, v{QA}")
        a(f"ds_read_b128 {v(QF+12,4)}, v{QA} offset:256")
        tokq = a.lg_tok()
        a(f"v_mul_u32_u24 v229, {KSTR}, v228")
        a(f"v_add_u32 v229, {KB}, v229")
        a(f"v_mov_b32 v230, {MP}")
        a(f"v_cndmask_b32 v229, v229, v230, {s(M3,2)}")
        a(f"v_add_u32 v{KA}, v229, v{t3}")
        a(f"v_mov_b32 v230, {3*KSTR}")
        a(f"v_cndmask_b32 v230, 0, v230, vcc")
        a(f"v_add_u32 v{KA+1}, v{KA}, v230")
        a(f"v_lshrrev_b32 v229, 2, v{t0}")
        a(f"v_lshl_add_u32 v229, v229, 4, s{T0}")
        a(f"v_and_b32 v230, 3, v{t0}")
        a(f"v_lshrrev_b32 v231, 1, v230")
        a(f"v_mul_u32_u24 v231, {VSTR}, v231")
        a(f"v_and_b32 v232, 1, v230")
        a(f"v_lshl_add_u32 v231, v232, 3, v231")
        a(f"v_add_u32 v231, v231, v229")
        a(f"v_add_u32 v{VX}, {VB}, v231")
        a(f"v_add_u32 v{VX+1}, {VB+3*VSTR}, v231")
        a(f"v_mov_b32 v231, {OB}")
        a(f"v_add_u32 v232, {VB+2*VSTR}, v229")
        a(f"v_cmp_eq_u32 vcc, 0, v230")
        a(f"v_cndmask_b32 v{VY}, v231, v232, vcc")
        a(f"v_add_u32 v232, 8, v232")
        a(f"v_cmp_eq_u32 vcc, 1, v230")
        a(f"v_cndmask_b32 v{VY+1}, v231, v232, vcc")
        a(f"v_lshlrev_b32 v229, 2, v{t1}")
        a(f"v_mov_b32 v230, {fbits(-1e30)}")
        for r in range(4):
            a(f"v_add_u32 v231, {r}, v229")
            a(f"v_cmp_gt_u32 vcc, v231, v{t2}")
            a(f"v_cndmask_b32 v{CD+r}, 0, v230, vcc")
            a(f"v_sub_f32 v{CO+r}, v230, v{CD+r}")
        a(f"v_mov_b32 v{STX}, v252")
        a(f"v_mov_b32 v229, {hex(OOB)}")
        a(f"v_cmp_gt_u32 vcc, 2, v{t1}")
        a(f"v_cndmask_b32 v{STZ}, v229, v252, vcc")
        a(f"s_mul_i32 s{T1}, s{RB}, 296")
        a(f"s_mul_i32 s{T2}, s{HP}, 5")
        a(f"s_add_u32 s{T1}, s{T1}, s{T2}")
        a(f"s_add_u32 s{T1}, s{T1}, 216")
        a(f"s_lshl_b32 s{T1}, s{T1}, 11")
        a(f"s_add_u32 s{SQ}, s{T1}, {hex(ACT)}")
        a.wait(lg=tokq)
        a(f"s_or_b64 vcc, {s(M2,2)}, {s(M3,2)}")
        a(f"v_mov_b32 v229, 0x3f80")
        for T in range(2):
            q = QF + 4 * T
            a(f"v_cndmask_b32 v{q}, v{q}, v229, {s(M3,2)}")
            a(f"v_cndmask_b32 v{q+1}, v{q+1}, 0, {s(M3,2)}")
            a(f"v_cndmask_b32 v{q+2}, v{q+2}, 0, vcc")
            a(f"v_cndmask_b32 v{q+3}, v{q+3}, 0, vcc")
            q = QF + 8 + 4 * T
            a(f"v_cndmask_b32 v{q}, v{q}, 0, {s(M2,2)}")
            a(f"v_cndmask_b32 v{q}, v{q}, v229, {s(M3,2)}")
            a(f"v_cndmask_b32 v{q+1}, v{q+1}, 0, vcc")
            a(f"v_cndmask_b32 v{q+2}, v{q+2}, 0, {s(M3,2)}")
            a(f"v_cndmask_b32 v{q+3}, v{q+3}, 0, {s(M3,2)}")
        for e in range(2):
            ktok = {}
            for t in range(2):
                a(f"ds_read_b128 {v(KF+4*(t%3),4)}, v{KA+e} offset:{t*256}")
                ktok[t] = a.lg_tok()
            pend = []
            seen = [0, 0]

            def take_max(T, t):
                b = S(T, t)
                m = MX + 2 * T
                if seen[T] == 0:
                    a(f"v_max_f32 v{m}, v{b}, v{b+1}")
                    a(f"v_max_f32 v{m+1}, v{b+2}, v{b+3}")
                else:
                    a(f"v_max3_f32 v{m}, v{b}, v{b+1}, v{m}")
                    a(f"v_max3_f32 v{m+1}, v{b+2}, v{b+3}, v{m+1}")
                seen[T] += 1
            for t in range(18):
                if t + 2 < 18:
                    a(f"ds_read_b128 {v(KF+4*((t+2)%3),4)}, v{KA+e} offset:{(t+2)*256}")
                    ktok[t + 2] = a.lg_tok()
                a.wait(lg=ktok[t])
                for T in range(2):
                    rel = t - T
                    if 0 <= rel <= 16:
                        c = v(CO, 4) if rel == 0 else v(CD, 4) if rel == 16 else "0"
                        a(f"v_mfma_f32_16x16x32_bf16 {v(S(T,t),4)}, {v(KF+4*(t%3),4)}, {v(QF+8*e+4*T,4)}, {c}")
                        pend.append((T, t))
                        if len(pend) > 3:
                            take_max(*pend.pop(0))
                if e == 0 and t == 8:
                    a.wait(vm=self.tok_hb)
                    self.flag(self.hb_flag, 228)
            vtok = {}

            def vread(p):
                b = VF + 8 * (p & 1)
                for i in range(2):
                    a(f"ds_read_b64_tr_b16 {v(b+2*i,2)}, v{VX+e} offset:{(2*p+i)*256}")
                for i in range(2):
                    a(f"ds_read_b64_tr_b16 {v(b+4+2*i,2)}, v{VY+e} offset:{(2*p+i)*256}")
                vtok[p] = a.lg_tok()
            vread(0)
            while pend:
                take_max(*pend.pop(0))
            for T in range(2):
                a(f"v_max_f32 v{MX+2*T}, v{MX+2*T}, v{MX+2*T+1}")
            for T in range(2):
                a(f"v_mov_b32 v{MX+2*T+1}, v{MX+2*T}")
            for T in range(2):
                a(f"v_permlane16_swap_b32 v{MX+2*T}, v{MX+2*T+1}")
            for T in range(2):
                a(f"v_max_f32 v{MX+2*T}, v{MX+2*T}, v{MX+2*T+1}")
            for T in range(2):
                a(f"v_mov_b32 v{MX+2*T+1}, v{MX+2*T}")
            for T in range(2):
                a(f"v_permlane32_swap_b32 v{MX+2*T}, v{MX+2*T+1}")
            for T in range(2):
                a(f"v_max_f32 v{MX+2*T}, v{MX+2*T}, v{MX+2*T+1}")
            started = [False, False]
            defer = []
            for p in range(9):
                for T in range(2):
                    tiles = [t for t in (2 * p, 2 * p + 1) if 0 <= t - T <= 16]
                    b = S(T, tiles[0])
                    n = 4 * len(tiles)
                    for i in range(n):
                        a(f"v_sub_f32 v{b+i}, v{b+i}, v{MX+2*T}")
                        if i >= 1:
                            a(f"v_exp_f32 v{b+i-1}, v{b+i-1}")
                        if i == 2:
                            for f in defer:
                                f()
                            defer = []
                            if T == 0 and p + 1 < 9:
                                vread(p + 1)
                    a(f"v_exp_f32 v{b+n-1}, v{b+n-1}")
                    for i in range(n // 2):
                        a(f"v_cvt_pk_bf16_f32 v{b+i}, v{b+2*i}, v{b+2*i+1}")

                    def pv(p=p, T=T, tiles=tiles, b=b):
                        a.wait(lg=vtok[p])
                        vb = VF + 8 * (p & 1)
                        for xy, acc in ((0, OX + 4 * T), (4, OY + 4 * T)):
                            c = v(acc, 4) if started[T] else "0"
                            if len(tiles) == 2:
                                a(f"v_mfma_f32_16x16x32_bf16 {v(acc,4)}, {v(vb+xy,4)}, {v(b,4)}, {c}")
                            else:
                                h = 2 * (tiles[0] & 1)
                                a(f"v_mfma_f32_16x16x16_bf16 {v(acc,4)}, {v(vb+xy+h,2)}, {v(b,2)}, {c}")
                        started[T] = True
                    defer.append(pv)
            for f in defer:
                f()
            for T in range(2):
                a(f"v_mov_b32 v{228+2*T}, v{OY+4*T}")
                a(f"v_mov_b32 v{229+2*T}, v{OY+4*T}")
            for T in range(2):
                a(f"v_permlane32_swap_b32 v{228+2*T}, v{229+2*T}")
            for T in range(2):
                a(f"v_rcp_f32 v{229+2*T}, v{229+2*T}")
            for T in range(2):
                for r in range(4):
                    a(f"v_mul_f32 v{OX+4*T+r}, v{OX+4*T+r}, v{229+2*T}")
                for r in range(4):
                    a(f"v_mul_f32 v{OY+4*T+r}, v{OY+4*T+r}, v{229+2*T}")
            xo = 232 + 4 * e
            for i in range(4):
                a(f"v_cvt_pk_bf16_f32 v{xo+i}, v{OX+2*i}, v{OX+2*i+1}")
            yo = YK if e == 0 else 240
            for i in range(4):
                a(f"v_cvt_pk_bf16_f32 v{yo+i}, v{OY+2*i}, v{OY+2*i+1}")
            a(f"v_permlane16_swap_b32 v{xo}, v{xo+2}")
            a(f"v_permlane16_swap_b32 v{xo+1}, v{xo+3}")
            a(f"s_add_u32 s{T1}, s{SQ}, {e*3*2048}")
            a(f"buffer_store_dwordx4 {v(xo,4)}, v{STX}, {s(S_WS,4)}, s{T1} offen sc1")
            if e == 1:
                for i in range(4):
                    a(f"v_cndmask_b32 v{yo+i}, v{yo+i}, v{YK+i}, {s(M0L,2)}")
                a(f"v_permlane16_swap_b32 v{yo}, v{yo+2}")
                a(f"v_permlane16_swap_b32 v{yo+1}, v{yo+3}")
                a(f"s_add_u32 s{T1}, s{SQ}, {2*2048}")
                a(f"buffer_store_dwordx4 {v(yo,4)}, v{STZ}, {s(S_WS,4)}, s{T1} offen sc1")
        a(f"s_lshl_b32 s{T1}, s{RB}, 4")
        a(f"s_add_u32 s{T1}, s{T1}, s{HP}")
        a(f"s_lshl_b32 s{T1}, s{T1}, 7")
        a(f"s_lshl_b32 s{T2}, s{W}, 2")
        a(f"s_add_u32 s{T1}, s{T1}, s{T2}")
        a(f"s_add_u32 s{T1}, s{T1}, {hex(FO)}")
        a.wait_all(lg=False)
        self.flag(T1, 228)
        a("s_setprio 0")
        self.stamp(7)

    def epoch_update(self):
        a = self.a
        L, D = a.new_label("ep"), a.new_label("epd")
        a(f"s_or_b32 s{T0}, s2, s{W}")
        a(f"s_cmp_lg_u32 s{T0}, 0")
        a(f"s_cbranch_scc1 {D}")
        st = a.state()
        a("v_mbcnt_lo_u32_b32 v40, -1, 0")
        a("v_mbcnt_hi_u32_b32 v40, -1, v40")
        a("v_lshrrev_b32 v41, 4, v40")
        a("v_and_b32 v40, 15, v40")
        a("v_lshlrev_b32 v40, 7, v40")
        a("v_lshl_add_u32 v40, v41, 12, v40")
        a(f"v_add_u32 v40, {hex(FH)}, v40")
        a(f"s_mov_b32 s{SPIN}, 0x40000")
        a.label(L)
        for k in range(4):
            a(f"s_mov_b32 s{T0}, {k*4*4096}")
            a(f"buffer_load_dwordx4 {v(8*k,4)}, v40, {s(S_WS,4)}, s{T0} offen sc1")
            a(f"buffer_load_dwordx4 {v(8*k+4,4)}, v40, {s(S_WS,4)}, s{T0} offen offset:16 sc1")
        a("s_waitcnt vmcnt(0)")
        a(f"v_xor_b32 v0, s{TAG}, v0")
        for r in range(1, 32):
            a(f"v_xor_b32 v{r}, s{TAG}, v{r}")
            a(f"v_or_b32 v0, v0, v{r}")
        a("v_cmp_ne_u32 vcc, 0, v0")
        E = a.new_label("epw")
        a(f"s_cbranch_vccz {E}")
        a(f"s_sub_u32 s{SPIN}, s{SPIN}, 1")
        a(f"s_cbranch_scc0 {L}")
        self.fail(7, 41)
        a.label(E)
        a(f"s_mov_b32 s{T0}, 0")
        self.flag(T0, 41)
        a.set_state(st)
        a.label(D)

    def dstage(self):
        a = self.a
        WR, AR = 80, 180
        VW, VW2, VA, FA, PD = 244, 245, 246, 247, 248
        d = RG
        a("v_mbcnt_lo_u32_b32 v249, -1, 0")
        a("v_mbcnt_hi_u32_b32 v249, -1, v249")
        a(f"v_lshlrev_b32 v{VW}, 4, v249")
        a(f"v_add_u32 v{VW2}, 0x1000, v{VW}")
        a(f"v_lshrrev_b32 v250, 4, v249")
        a(f"v_and_b32 v251, 15, v249")
        a(f"v_lshlrev_b32 v251, 4, v251")
        a(f"v_lshl_add_u32 v{VA}, v250, 11, v251")
        a(f"s_mul_i32 s{T0}, s{d}, 6")
        a(f"s_min_u32 s{T0}, s{T0}, 17")
        a(f"s_add_u32 s{LCNT}, s{T0}, 32")
        a(f"s_lshr_b32 s{T1}, s{d}, 1")
        a(f"s_sub_u32 s{T1}, 5, s{T1}")
        a("v_min_u32 v250, 37, v249")
        a("v_lshrrev_b32 v251, 1, v250")
        a(f"s_lshl_b32 s{T2}, s{d}, 3")
        a(f"v_add_u32 v252, s{T2}, v251")
        a(f"v_subrev_u32 v253, 8, v251")
        a(f"v_min_u32 v253, s{T1}, v253")
        a(f"v_add_u32 v253, s{LCNT}, v253")
        a("v_cmp_lt_u32 vcc, 7, v251")
        a("v_cndmask_b32 v252, v252, v253, vcc")
        a(f"s_mul_i32 s{T2}, s{d}, 5")
        a(f"s_add_u32 s{T2}, s{T2}, 40")
        a(f"v_add_u32 v253, s{T2}, v251")
        a("v_cmp_lt_u32 vcc, 13, v251")
        a("v_cndmask_b32 v252, v252, v253, vcc")
        a(f"s_mul_i32 s{T2}, s{CC}, 5")
        a(f"s_lshr_b32 s{T2}, s{T2}, 2")
        a("v_and_b32 v250, 1, v250")
        a(f"v_add_u32 v250, s{T2}, v250")
        a("v_mul_u32_u24 v250, 74, v250")
        a("v_add_u32 v250, v250, v252")
        a("v_lshrrev_b32 v251, 3, v250")
        a("v_and_b32 v250, 7, v250")
        a("v_lshlrev_b32 v250, 2, v250")
        a("v_lshl_add_u32 v250, v251, 7, v250")
        a(f"v_add_u32 v{FA}, {hex(FP)}, v250")
        a(f"s_mul_i32 s{SD_W}, s{CC}, 5120")
        a(f"s_add_u32 s{SD_W}, s{SD_W}, {hex(WP)}")
        a(f"s_mul_i32 s{SD_A}, s{RBD}, {296*2048}")
        a(f"s_lshl_b32 s{T2}, s{HB}, 10")
        a(f"s_add_u32 s{SD_A}, s{SD_A}, s{T2}")
        a(f"s_add_u32 s{SD_A}, s{SD_A}, {hex(ACT)}")
        a.wait(vm=self.tok_hb)
        self.flag(self.hb_flag, PD)
        self.poll(FA, PD, 3)

        def pstep(n):
            if n < 8:
                a(f"s_lshl_b32 s{T2}, s{d}, 3")
                a(f"s_add_u32 s{T2}, s{T2}, {n}")
            elif n < 14:
                a(f"s_add_u32 s{T2}, s{LCNT}, {n-8}")
            else:
                a(f"s_mul_i32 s{T2}, s{d}, 5")
                a(f"s_add_u32 s{T2}, s{T2}, {54+n-14}")

        def guard(n):
            if n == 13:
                a(f"s_cmp_lt_u32 s{d}, 2")
                a(f"s_cselect_b32 s{T3}, s{T3}, {hex(OOB)}")
        wtok, atok = {}, {}

        def wload_ops(n):
            b = WR + 20 * (n % 5)
            ops = [lambda: (pstep(n), a(f"s_mul_i32 s{T3}, s{T2}, 40960"), a(f"s_add_u32 s{T3}, s{T3}, s{SD_W}"), guard(n), a(f"s_mov_b32 s{T4}, s{T3}")) and 1]
            for ct in range(5):
                if ct < 4:
                    ops.append(f"buffer_load_dwordx4 {v(b+4*ct,4)}, v{VW}, {s(S_WS,4)}, s{T4} offen offset:{ct*1024} sc1")
                else:
                    ops.append(f"buffer_load_dwordx4 {v(b+4*ct,4)}, v{VW2}, {s(S_WS,4)}, s{T4} offen sc1")
            ops.append(lambda: wtok.__setitem__(n, a.vm_tok()) or 0)
            return ops

        def aload_ops(n):
            b = AR + 16 * (n % 4)
            ops = [lambda: (pstep(n), a(f"s_lshl_b32 s{T3}, s{T2}, 13"), a(f"s_add_u32 s{T3}, s{T3}, s{SD_A}"), guard(n), a(f"s_mov_b32 s{T5}, s{T3}")) and 1]
            for T in range(4):
                ops.append(f"buffer_load_dwordx4 {v(b+4*T,4)}, v{VA}, {s(S_WS,4)}, s{T5} offen offset:{T*256} sc1")
            ops.append(lambda: atok.__setitem__(n, a.vm_tok()) or 0)
            return ops

        def run(ops):
            a.add_fill(ops)
            a.flush()

        def hflags(first, cntm1):
            a("v_lshrrev_b32 v250, 1, v249")
            a(f"v_min_u32 v250, {cntm1}, v250")
            a(f"v_add_u32 v250, {first}, v250")
            a("v_lshrrev_b32 v251, 1, v250")
            a(f"s_lshl_b32 s{T2}, s{RBD}, 5")
            a(f"v_add_u32 v251, s{T2}, v251")
            a("v_lshlrev_b32 v251, 7, v251")
            a("v_and_b32 v250, 1, v250")
            a("v_lshl_add_u32 v251, v250, 4, v251")
            a("v_and_b32 v250, 1, v249")
            a("v_lshl_add_u32 v251, v250, 2, v251")
            a(f"s_lshl_b32 s{T2}, s{HB}, 3")
            a(f"s_add_u32 s{T2}, s{T2}, {hex(FH)}")
            a(f"v_add_u32 v{FA}, s{T2}, v251")
        run(wload_ops(0))
        run(wload_ops(1))
        a(f"s_lshl_b32 s{T0}, s{d}, 3")
        hflags(f"s{T0}", "7")
        self.poll(FA, PD, 4)
        self.stamp(6)
        for n in range(4):
            run(aload_ops(n))
            if n + 2 <= 4:
                run(wload_ops(n + 2))
        for n in range(19):
            a.wait(vm=max(wtok[n], atok[n]))
            wb, ab = WR + 20 * (n % 5), AR + 16 * (n % 4)
            for T in range(4):
                for ct in range(5):
                    acc = (T * 5 + ct) * 4
                    c = "0" if n == 0 else v(acc, 4)
                    a(f"v_mfma_f32_16x16x32_bf16 {v(acc,4)}, {v(wb+4*ct,4)}, {v(ab+4*T,4)}, {c}")
                    a.fill(1)
            a.flush()
            nxt = []
            if n == 4:
                a(f"s_lshr_b32 s{T1}, s{d}, 1")
                a(f"s_sub_u32 s{T1}, 5, s{T1}")
                hflags(f"s{LCNT}", f"s{T1}")
                self.poll(FA, PD, 5)
            if n + 4 < 14 or (14 <= n and n + 4 < 19):
                nxt += aload_ops(n + 4)
            if n + 5 < 19:
                nxt += wload_ops(n + 5)
            if n == 13:
                run(nxt)
                nxt = []
                self.stamp(7)
                a("v_lshrrev_b32 v250, 1, v249")
                a("v_and_b32 v250, 3, v250")
                a(f"s_lshl_b32 s{T2}, s{RBD}, 2")
                a(f"s_add_u32 s{T2}, s{T2}, s{d}")
                a(f"s_lshl_b32 s{T2}, s{T2}, 9")
                a(f"s_lshl_b32 s{T3}, s{HB}, 3")
                a(f"s_add_u32 s{T2}, s{T2}, s{T3}")
                a(f"s_add_u32 s{T2}, s{T2}, {hex(FO)}")
                a(f"v_lshl_add_u32 v251, v250, 7, s{T2}")
                a("v_and_b32 v250, 1, v249")
                a(f"v_lshl_add_u32 v{FA}, v250, 2, v251")
                self.poll(FA, PD, 6)
                self.stamp(8)
                for k in range(14, 18):
                    run(aload_ops(k))
            run(nxt)

    def final_addr(self, b):
        a = self.a
        t = b + 12
        a(f"v_mbcnt_lo_u32_b32 v{t}, -1, 0")
        a(f"v_mbcnt_hi_u32_b32 v{t}, -1, v{t}")
        a(f"s_lshl_b32 s{T0}, s{HH}, 6")
        a(f"s_lshl_b32 s{T1}, s{W}, 3")
        a(f"s_add_u32 s{T0}, s{T0}, s{T1}")
        a(f"s_mul_i32 s{T0}, s{T0}, 1280")
        a(f"s_mul_i32 s{T2}, s{CC}, 160")
        a(f"s_add_u32 s{T0}, s{T0}, s{T2}")
        a(f"s_mul_i32 s{T1}, s{T1}, {RSTR}")
        for i in range(3):
            a(f"v_add_u32 v{t+1}, {64*i}, v{t}")
            a(f"v_mul_u32_u24 v{t+2}, 0xccd, v{t+1}")
            a(f"v_lshrrev_b32 v{t+2}, 16, v{t+2}")
            a(f"v_mul_u32_u24 v{t+3}, 20, v{t+2}")
            a(f"v_sub_u32 v{t+3}, v{t+1}, v{t+3}")
            a(f"v_mul_u32_u24 v{b+i}, {RSTR}, v{t+2}")
            a(f"v_lshl_add_u32 v{b+i}, v{t+3}, 4, v{b+i}")
            a(f"v_add_u32 v{b+i}, s{T1}, v{b+i}")
            a(f"v_mul_u32_u24 v{b+3+i}, 0x500, v{t+2}")
            a(f"v_lshl_add_u32 v{b+3+i}, v{t+3}, 3, v{b+3+i}")
            a(f"v_add_u32 v{b+3+i}, s{T0}, v{b+3+i}")
            if i == 2:
                a(f"v_mov_b32 v{t+2}, {hex(OOB)}")
                a(f"v_cmp_gt_u32 vcc, 32, v{t}")
                a(f"v_cndmask_b32 v{b+5}, v{t+2}, v{b+5}, vcc")
                a(f"v_cndmask_b32 v{b+2}, 0, v{b+2}, vcc")
            a(f"buffer_load_dwordx2 {v(b+6+2*i,2)}, v{b+3+i}, {s(S_X,4)}, 0 offen")
        return a.vm_tok()

    def red_write(self):
        a = self.a
        a("v_and_b32 v250, 15, v249")
        a(f"v_mul_u32_u24 v250, {RSTR}, v250")
        a("v_lshrrev_b32 v251, 4, v249")
        a("v_lshl_add_u32 v250, v251, 4, v250")
        a(f"s_mul_i32 s{T0}, s{RG}, {RSZ}")
        a(f"v_add_u32 v250, s{T0}, v250")
        a("s_barrier")
        for T in range(4):
            for ct in range(5):
                a(f"ds_write_b128 v250, {v((T*5+ct)*4,4)} offset:{T*16*RSTR+ct*64}")
        a.wait_all(vm=False)

    def final(self, b):
        a = self.a
        a("s_barrier")
        self.stamp(9)
        for i in range(3):
            for dd in range(4):
                a(f"ds_read_b128 {v(16*i+4*dd,4)}, v{b+i} offset:{dd*RSZ}")
        a("s_waitcnt vmcnt(0)")
        base = a.lg_tok() - 12
        for i in range(3):
            x = b + 6 + 2 * i
            a(f"v_lshlrev_b32 v48, 16, v{x}")
            a(f"v_and_b32 v49, 0xffff0000, v{x}")
            a(f"v_lshlrev_b32 v50, 16, v{x+1}")
            a(f"v_and_b32 v51, 0xffff0000, v{x+1}")
            a.wait(lg=base + 4 * (i + 1))
            r0 = 16 * i
            for r in range(4):
                a(f"v_add_f32 v{r0+r}, v{r0+r}, v{r0+4+r}")
            for r in range(4):
                a(f"v_add_f32 v{r0+8+r}, v{r0+8+r}, v{r0+12+r}")
            for r in range(4):
                a(f"v_add_f32 v{r0+r}, v{r0+r}, v{48+r}")
            for r in range(4):
                a(f"v_add_f32 v{r0+r}, v{r0+r}, v{r0+8+r}")
            a(f"v_cvt_pk_bf16_f32 v{r0}, v{r0}, v{r0+1}")
            a(f"v_cvt_pk_bf16_f32 v{r0+1}, v{r0+2}, v{r0+3}")
            a(f"buffer_store_dwordx2 {v(r0,2)}, v{b+3+i}, {s(S_OUT,4)}, 0 offen")

    def diag_out(self):
        if not self.diag:
            return
        a = self.a
        a("s_waitcnt vmcnt(0)")
        self.stamp(10)
        a(f"s_lshl_b32 s{T0}, s2, 3")
        a(f"s_add_u32 s{T0}, s{T0}, s{W}")
        a(f"s_lshl_b32 s{T0}, s{T0}, 6")
        a(f"s_add_u32 s{T0}, s{T0}, {hex(DIAG)}")
        for i in range(10):
            a(f"v_mov_b32 v60, s{STAMP+i}")
            a(f"buffer_store_dword v60, v254, {s(S_WS,4)}, s{T0} offen offset:{4*i}")
        a(f"v_mov_b32 v60, s100")
        a(f"buffer_store_dword v60, v254, {s(S_WS,4)}, s{T0} offen offset:40")

    def build(self):
        a = self.a
        self.prologue()
        self.p1()
        self.p2a()
        LT3, LJ, LDW, LFIN = "L_three", "L_join", "L_dwave", "L_final"
        self.p2_step_head(25)
        self.stamp(4)
        a(f"s_cmp_ge_u32 s{CG}, 11")
        a(f"s_cbranch_scc1 {LT3}")
        st = a.state()
        win = self.p2win
        self.p2b()
        a.wait(lg=a.lg_tok())
        a("s_barrier")
        self.p2_mfmas(4, 3, 160, 0)
        self.stamp(5)
        self.gather()
        a.add_fill(self.e2_ops(160, CS2B, SHB, 176, "tok_hb"))
        a.flush()
        a(f"s_mov_b32 s{FHA}, s{FHB}")
        after4 = a.vm - self.tok_g
        assert self.tok_hb == a.vm
        a.wait(vm=self.tok_g)
        a(f"s_branch {LJ}")
        a.label(LT3)
        a("s_nop 1")
        a.set_state(st)
        self.p2_mfmas(4, 3, 208, 0)
        self.pack_jobs()
        a.add_fill(self.silu_scale_ops())
        a.add_fill(self.e2_ops(208, CS2A, SHA, 176, "tok_h"))
        a.flush()
        a.wait(vm=self.tok_p)
        self.flag(PKF0, 255)
        self.flag(PKF1, 255)
        a.wait(vm=self.tok_h)
        self.flag(FHA, 255)
        a.wait(lg=a.lg_tok())
        a("s_barrier")
        self.stamp(5)
        self.gather()
        a.wait_all(lg=False)
        a(f"s_mov_b32 s{FHA}, {hex(OOB)}")
        a.label(LJ)
        a.vm += after4
        self.tok_hb = a.vm
        self.hb_flag = FHA
        a("s_barrier")
        a(f"s_cmp_ge_u32 s{W}, 4")
        a(f"s_cbranch_scc1 {LDW}")
        st = a.state()
        self.stamp(6)
        self.attention()
        self.final_addr(100)
        self.epoch_update()
        a("s_barrier")
        a(f"s_branch {LFIN}")
        a.label(LDW)
        a.set_state(st)
        self.dstage()
        self.final_addr(100)
        self.red_write()
        a.label(LFIN)
        a.lg_done = a.lg
        self.final(100)
        self.diag_out()
        a.label("L_end")
        a("s_endpgm")
        return a.text()


HEADER = """; Fused LayerNorm + QKV + sliding-window attention + SiLU FFN + output projection, one persistent launch.
; @launch grid=(256,1,1) block=(512,1,1) lds={lds}
.amdgcn_target "amdgcn-amd-amdhsa--gfx950"
.text
.globl {name}_kernel
.p2align 8
.type {name}_kernel,@function
{name}_kernel:
"""
FOOTER = """.section .rodata,"a"
.p2align 6
.amdhsa_kernel {name}_kernel
  .amdhsa_next_free_vgpr 256
  .amdhsa_next_free_sgpr 102
  .amdhsa_accum_offset 256
  .amdhsa_group_segment_fixed_size 0
  .amdhsa_kernarg_size 72
  .amdhsa_user_sgpr_count 2
  .amdhsa_user_sgpr_kernarg_segment_ptr 1
  .amdhsa_system_sgpr_workgroup_id_x 1
.end_amdhsa_kernel
"""


def generate(**kw):
    g = Gen(**kw)
    body = g.build()
    return HEADER.format(name=NAME, lds=LDS_BYTES) + body + FOOTER.format(name=NAME), g


if __name__ == "__main__":
    import argparse
    ap = argparse.ArgumentParser()
    ap.add_argument("-o", default=f"cdna_kernels/{NAME}.s")
    ap.add_argument("--diag", action="store_true")
    ap.add_argument("--rot", type=int, default=1)
    args = ap.parse_args()
    text, g = generate(diag=args.diag, rotmode=args.rot)
    open(args.o, "w").write(text)
    print(args.o, len(text), "bytes,", len(g.a.ins), "instructions,", g.a.nops_added, "nops added")
```

```python
import sys, os, struct
sys.path.insert(0, os.path.dirname(os.path.abspath(__file__)))
from asmlib import Asm, v, s

NAME = "parallel_sum__sliding_block__dense_activation_silu__prompt"

FQ, FH, FO, FP = 0x1000, 0x11000, 0x21000, 0x29000
STATS = 0x30000
QKV = 0x40000
ACT = 0x7C0000
WP = 0x1100000
WS_END = 0x13E4000
DIAG = 0x1400000
OOB = 0x80000000
TAGK = 0x9E3779B9

CELL = 16384
KB, KSTR = 49152, 6144
VB, VSTR = 79872, 6272
QB = 111232
MP = 147456
OB = MP + 6144
CS1, CS2A, CS2B = 158208, 158720, 159232
LDS_BYTES = 159744
RSTR, RSZ = 336, 64 * 336

S_X, S_WA, S_W1, S_WS, S_OUT, S_B0, S_B1 = 4, 8, 12, 16, 20, 24, 28
TAG, W, RG, U, RB, CG, HP = 32, 33, 34, 35, 36, 37, 38
W2048, KB1, SXB, SWB, STRA, KB2, SPB = 39, 40, 41, 42, 43, 44, 45
T0, T1, T2, T3, T4, T5 = 46, 47, 48, 49, 50, 51
CT = 52
CT2 = 56
SQ, SHA, SHB = 58, 59, 60
FQA, FHA, FHB = 61, 62, 63
QSC = 64
SPIN = 65
SB0, SB1, SBSTEP = 66, 67, 68
PKO0, PKO1, PKF0, PKF1 = 69, 70, 71, 72
M2, M3, M0L = 74, 76, 78
DBG = 80
HH, CC, RBD, HB = 82, 83, 84, 85
SD_W, SD_A = 86, 87
ROT = 88
G0, G1, G2, G3, G4, G5 = 40, 41, 42, 43, 52, 53
LCNT = 89
STAMP = 90

LOG2E = 1.4426950408889634


def fbits(x):
    return "0x%08x" % struct.unpack("<I", struct.pack("<f", x))[0]


class Gen:
    def __init__(self, diag=False, rotmode=1, **opt):
        self.a = Asm()
        self.diag = diag
        self.rotmode = rotmode
        self.opt = dict(spin=0x10000, dma0=1, dmagap=4, wgran=1, look=6, stats_step=8, fast=1, outsc="", gpoll=136, gdma=144, prio=1)
        self.opt.update(opt)
        self.clk = "s_memtime" if diag == 2 else "s_memrealtime"

    def stamp(self, idx):
        if not self.diag:
            return
        a = self.a
        a("s_waitcnt lgkmcnt(0)")
        a.lg_done = a.lg
        a(f"{self.clk} s[100:101]")
        a("s_waitcnt lgkmcnt(0)")
        a(f"s_mov_b32 s{STAMP+idx}, s100")

    def poll(self, addr, dst, code):
        a = self.a
        L, D = a.new_label("poll"), a.new_label("polled")
        a(f"s_mov_b32 s{SPIN}, {hex(self.opt['spin'])}")
        a.label(L)
        a(f"buffer_load_dword {v(dst)}, {v(addr)}, {s(S_WS,4)}, 0 offen sc1")
        a.wait_all(lg=False)
        a(f"v_cmp_ne_u32 vcc, s{TAG}, {v(dst)}")
        a(f"s_cbranch_vccz {D}")
        a("s_sleep 1")
        a(f"s_sub_u32 s{SPIN}, s{SPIN}, 1")
        a(f"s_cbranch_scc0 {L}")
        self.fail(code, dst)
        a.label(D)

    def poll_issue(self, addr, dst):
        a = self.a
        a(f"buffer_load_dword {v(dst)}, {v(addr)}, {s(S_WS,4)}, 0 offen sc1")
        return a.vm_tok()

    def poll_check(self, tok, addr, dst, code):
        a = self.a
        D = a.new_label("early")
        a.wait(vm=tok)
        a(f"v_cmp_ne_u32 vcc, s{TAG}, {v(dst)}")
        a(f"s_cbranch_vccz {D}")
        st = a.state()
        self.poll(addr, dst, code)
        a.set_state(st)
        a.label(D)

    def fail(self, code, tmp):
        a = self.a
        st = a.state()
        a(f"v_mov_b32 {v(tmp)}, {code}")
        a(f"v_mov_b32 v255, 0")
        a(f"global_store_dword v255, {v(tmp)}, {s(DBG,2)}")
        a.set_state(st)

    def flag(self, sreg, tmp):
        a = self.a
        a(f"v_mov_b32 {v(tmp)}, s{TAG}")
        a(f"buffer_store_dword {v(tmp)}, v254, {s(S_WS,4)}, s{sreg} offen sc1")

    def prologue(self):
        a = self.a
        a("s_cmp_ge_u32 s2, 256")
        a("s_cbranch_scc1 L_end")
        a("s_load_dwordx2 s[16:17], s[0:1], 64")
        a("s_load_dwordx2 s[4:5], s[0:1], 0")
        a("s_load_dwordx2 s[8:9], s[0:1], 8")
        a("s_load_dwordx2 s[12:13], s[0:1], 32")
        a("s_load_dwordx2 s[20:21], s[0:1], 48")
        a(f"s_load_dwordx2 {s(DBG,2)}, s[0:1], 56")
        a("s_load_dwordx2 s[92:93], s[0:1], 16")
        a("s_load_dwordx2 s[94:95], s[0:1], 40")
        if self.diag:
            a(f"{self.clk} s[100:101]")
        a(f"v_lshrrev_b32 v1, 6, v0")
        a(f"v_and_b32 v0, 63, v0")
        a(f"v_readfirstlane_b32 s{W}, v1")
        a(f"s_and_b32 s{T0}, s2, 7")
        a(f"s_lshr_b32 s{T1}, s2, 3")
        a(f"s_and_b32 s{T2}, s{T0}, 1")
        a(f"s_lshl_b32 s{T2}, s{T2}, 3")
        a(f"s_and_b32 s{T3}, s{T1}, 7")
        a(f"s_add_u32 s{RB}, s{T2}, s{T3}")
        a(f"s_lshr_b32 s{T2}, s{T0}, 1")
        a(f"s_lshr_b32 s{T4}, s{T1}, 3")
        a(f"s_lshl_b32 s{T5}, s{T4}, 2")
        a(f"s_add_u32 s{CG}, s{T2}, s{T5}")
        a(f"s_lshl_b32 s{T5}, s{T2}, 2")
        a(f"s_add_u32 s{HP}, s{T5}, s{T4}")
        if self.rotmode == 0:
            a(f"s_mov_b32 s{ROT}, 0")
        elif self.rotmode == 1:
            a(f"s_mul_i32 s{T5}, s{T4}, 5")
            a(f"s_lshr_b32 s{T5}, s{T5}, 1")
            a(f"s_add_u32 s{ROT}, s{T5}, s{T3}")
            a(f"s_sub_u32 s{T5}, s{ROT}, 10")
            a(f"s_cselect_b32 s{ROT}, s{ROT}, s{T5}")
        a(f"s_and_b32 s{T5}, s{T1}, 3")
        a(f"s_lshl_b32 s{HH}, s{T0}, 2")
        a(f"s_add_u32 s{HH}, s{HH}, s{T5}")
        a(f"s_lshr_b32 s{CC}, s{T1}, 2")
        a(f"s_lshr_b32 s{RBD}, s{HH}, 1")
        a(f"s_and_b32 s{HB}, s{HH}, 1")
        a(f"s_and_b32 s{RG}, s{W}, 3")
        a(f"s_lshr_b32 s{U}, s{W}, 2")
        a(f"s_lshl_b32 s{W2048}, s{W}, 11")
        a("v_and_b32 v1, 15, v0")
        a("v_lshrrev_b32 v2, 4, v0")
        a("v_lshrrev_b32 v3, 3, v0")
        a("v_and_b32 v4, 7, v0")
        a("v_xor_b32 v5, v4, v2")
        a("v_mul_u32_u24 v6, 0x500, v3")
        a("v_lshl_add_u32 v248, v5, 4, v6")
        a("v_xor_b32 v249, 64, v248")
        a(f"v_add_u32 v249, {8*1280-1024}, v249")
        a("v_and_b32 v7, 3, v3")
        a("v_lshrrev_b32 v8, 5, v0")
        a("v_lshl_add_u32 v7, v8, 3, v7")
        a("v_lshlrev_b32 v8, 1, v2")
        a("v_xor_b32 v8, v4, v8")
        a("v_lshlrev_b32 v8, 4, v8")
        a("v_mul_u32_u24 v9, 0xf00, v7")
        a("v_add_u32 v250, v9, v8")
        a("v_mul_u32_u24 v9, 0xd80, v7")
        a("v_add_u32 v251, v9, v8")
        a("v_lshlrev_b32 v10, 4, v0")
        a("v_add_u32 v11, 0x400, v10")
        a(f"v_mov_b32 v12, {hex(OOB)}")
        a("v_cmp_gt_u32 vcc, 16, v0")
        a("v_cndmask_b32 v11, v12, v11, vcc")
        a("v_cmp_eq_u32 vcc, 0, v0")
        a("v_cndmask_b32 v254, v12, v0, vcc")
        a(f"s_lshl_b32 s{T0}, s{RB}, 7")
        a(f"s_lshl_b32 s{T1}, s{CG}, 3")
        a(f"s_add_u32 s{T1}, s{T1}, s{W}")
        a(f"s_add_u32 s{T1}, s{T1}, s{T0}")
        a(f"s_mul_i32 s{T2}, s{T1}, 1280")
        a(f"s_lshl_b32 s{T3}, s{W}, 4")
        a(f"s_add_u32 s{T3}, s{T3}, s{T0}")
        a(f"s_mul_i32 s{SXB}, s{T3}, 1280")
        a(f"s_lshr_b32 s{T3}, s{RG}, 1")
        a(f"s_lshl_b32 s{T3}, s{T3}, 5")
        a(f"s_and_b32 s{T4}, s{RG}, 1")
        a(f"s_lshl_b32 s{T4}, s{T4}, 2")
        a(f"s_add_u32 s{T3}, s{T3}, s{T4}")
        a(f"s_mul_i32 s{SWB}, s{T3}, 3840")
        a(f"s_mul_i32 s{SPB}, s{T3}, 3456")
        a(f"s_lshl_b32 s{T4}, s{CG}, 1")
        a(f"s_add_u32 s{T4}, s{T4}, s{U}")
        a(f"s_lshl_b32 s{T5}, s{T4}, 7")
        a(f"s_add_u32 s{SWB}, s{SWB}, s{T5}")
        a("s_waitcnt lgkmcnt(0)")
        a(f"s_load_dword s{TAG}, s[16:17], 0")
        if self.diag:
            a(f"s_mov_b32 s{STAMP}, s100")
        for base, size in ((S_X, 2048 * 1280), (S_W1, 640 * 3456), (S_OUT, 2048 * 1280),
                           (S_WS, DIAG + 0x100000 if self.diag else WS_END)):
            a(f"s_mov_b32 s{base+2}, {hex(size)}")
            a(f"s_mov_b32 s{base+3}, 0x20000")
        a(f"s_cmp_lt_u32 s{CG}, 15")
        a(f"s_cselect_b32 s{S_WA+2}, {hex(640*3840)}, 0")
        a(f"s_mov_b32 s{S_WA+3}, 0x20000")
        a(f"s_mov_b32 s{KB1}, s{ROT}")
        a(f"s_mov_b32 s{SD_W}, s{T2}")
        a(f"s_lshl_b32 s{SD_A}, s{T1}, 4")
        a(f"s_add_u32 s{SD_A}, s{SD_A}, {hex(STATS)}")
        self.item_tok = {}
        self.issue_item(0)
        self.issue_item(1)
        a(f"buffer_load_dwordx4 v[140:143], v10, {s(S_X,4)}, s{SD_W} offen")
        a(f"buffer_load_dwordx4 v[144:147], v11, {s(S_X,4)}, s{SD_W} offen")
        self.tok_row = a.vm_tok()
        self.issue_item(2)
        self.issue_item(3)
        a(f"s_mul_i32 s{T0}, s{RB}, 240")
        a(f"s_lshl_b32 s{T1}, s{T4}, 3")
        a(f"s_add_u32 s{T0}, s{T0}, s{T1}")
        a(f"s_lshl_b32 s{T0}, s{T0}, 11")
        a(f"s_add_u32 s{T0}, s{T0}, {hex(QKV)}")
        a(f"s_cmp_lt_u32 s{CG}, 15")
        a(f"s_cselect_b32 s{SQ}, s{T0}, {hex(OOB)}")
        a(f"s_cmp_lt_u32 s{T4}, 10")
        a(f"s_cselect_b32 s{QSC}, {fbits(LOG2E * 20 ** -0.5)}, 1.0")
        a(f"s_lshl_b32 s{T0}, s{RB}, 5")
        a(f"s_add_u32 s{T1}, s{T0}, s{T4}")
        a(f"s_lshl_b32 s{T1}, s{T1}, 7")
        a(f"s_lshl_b32 s{T2}, s{RG}, 2")
        a(f"s_add_u32 s{T1}, s{T1}, s{T2}")
        a(f"s_add_u32 s{FQA}, s{T1}, {hex(FQ)}")
        a(f"s_add_u32 s{T1}, s{T0}, s{CG}")
        a(f"s_lshl_b32 s{T1}, s{T1}, 7")
        a(f"s_lshl_b32 s{T2}, s{W}, 2")
        a(f"s_add_u32 s{T1}, s{T1}, s{T2}")
        a(f"s_add_u32 s{FHA}, s{T1}, {hex(FH)}")
        a(f"s_add_u32 s{FHB}, s{FHA}, {16*128}")
        a(f"s_mul_i32 s{T0}, s{RB}, 296")
        a(f"s_lshl_b32 s{T1}, s{CG}, 3")
        a(f"s_add_u32 s{T0}, s{T0}, s{T1}")
        a(f"s_lshl_b32 s{T0}, s{T0}, 11")
        a(f"s_add_u32 s{SHA}, s{T0}, {hex(ACT)}")
        a(f"s_add_u32 s{SHB}, s{SHA}, {16*8*2048}")
        for t in range(4):
            a(f"s_add_u32 s{T0}, s{RG}, {t}")
            a(f"s_and_b32 s{T0}, s{T0}, 3")
            a(f"s_lshl_b32 s{CT+t}, s{T0}, 6")
        for t in range(2):
            a(f"s_add_u32 s{T0}, s{RG}, {t}")
            a(f"s_and_b32 s{T0}, s{T0}, 1")
            a(f"s_lshl_b32 s{T1}, s{U}, 1")
            a(f"s_add_u32 s{T0}, s{T0}, s{T1}")
            a(f"s_lshl_b32 s{CT2+t}, s{T0}, 6")
        a(f"s_add_u32 s{KB2}, s{ROT}, s{U}")
        a(f"s_cmp_eq_u32 s{KB2}, 10")
        a(f"s_cselect_b32 s{KB2}, 0, s{KB2}")
        a(f"s_lshl_b32 s{T0}, s{CG}, 7")
        a(f"s_add_u32 s{SPB}, s{SPB}, s{T0}")
        self.setup_b_items()
        a("v_lshrrev_b32 v13, 2, v0")
        a("v_and_b32 v13, 3, v13")
        a("v_and_b32 v14, 1, v2")
        a("v_lshl_add_u32 v13, v14, 2, v13")
        a("v_lshrrev_b32 v14, 1, v13")
        a("v_lshlrev_b32 v13, 7, v13")
        a("v_lshrrev_b32 v15, 1, v2")
        a("v_lshl_add_u32 v13, v15, 10, v13")
        a("v_and_b32 v15, 3, v0")
        a("v_lshl_add_u32 v13, v15, 3, v13")
        a(f"s_lshr_b32 s{T3}, s{RG}, 1")
        a(f"s_lshl_b32 s{T0}, s{T3}, 12")
        a(f"s_lshl_b32 s{T1}, s{U}, 13")
        a(f"s_add_u32 s{T0}, s{T0}, s{T1}")
        a(f"v_add_u32 v15, s{T0}, v13")
        for t in range(4):
            a(f"s_lshr_b32 s{T1}, s{CT+t}, 6")
            a(f"v_xor_b32 v16, s{T1}, v14")
            a(f"v_lshl_add_u32 v{242+t}, v16, 5, v15")
        a("v_lshl_add_u32 v239, v14, 16, v13")
        a("v_lshrrev_b32 v15, 1, v1")
        a("v_xor_b32 v15, v15, v2")
        a("v_lshlrev_b32 v15, 4, v15")
        a("v_lshl_add_u32 v15, v1, 7, v15")
        a(f"s_lshl_b32 s{T0}, s{RG}, 12")
        a(f"v_add_u32 v15, s{T0}, v15")
        a(f"s_lshl_b32 s{T0}, s{T3}, 6")
        a(f"v_xor_b32 v246, s{T0}, v15")
        a("v_xor_b32 v247, 64, v246")
        a("v_lshrrev_b32 v15, 1, v2")
        a("v_lshlrev_b32 v15, 11, v15")
        a("v_and_b32 v16, 31, v0")
        a("v_lshl_add_u32 v15, v16, 4, v15")
        a(f"s_lshl_b32 s{T0}, s{RG}, 9")
        a(f"v_add_u32 v252, s{T0}, v15")
        a("v_lshlrev_b32 v253, 4, v2")
        for r in range(228, 232):
            a(f"v_mov_b32 v{r}, 0x3f803f80")
        a(f"s_lshl_b32 s{T0}, s{W}, 6")
        a(f"v_add_u32 v15, s{T0}, v0")
        a(f"s_lshl_b32 s{T0}, s{RB}, 7")
        a(f"v_add_u32 v16, s{T0}, v15")
        a("v_mov_b32 v17, 0xf149")
        a("v_cmp_gt_u32 vcc, 0x100, v16")
        a("v_cndmask_b32 v20, 0, v17, vcc")
        a("v_mov_b32 v21, 0")
        a("v_mov_b32 v22, 0")
        a("v_mov_b32 v23, 0")
        a(f"v_cmp_gt_u32 vcc, 0x180, v15")
        a(f"v_lshlrev_b32 v16, 4, v15")
        a(f"v_add_u32 v16, {MP}, v16")
        a(f"s_mov_b64 exec, vcc")
        a("ds_write_b128 v16, v[20:23]")
        a("s_mov_b64 exec, -1")
        a(f"v_cmp_gt_u32 vcc, 18, v15")
        a(f"v_lshlrev_b32 v16, 8, v15")
        a(f"v_add_u32 v16, {OB}, v16")
        a(f"s_mov_b64 exec, vcc")
        a("ds_write_b64 v16, v[228:229]")
        a("s_mov_b64 exec, -1")
        a("v_cmp_gt_u32 vcc, 16, v0")
        a(f"s_mov_b64 {s(M3,2)}, vcc")
        a.wait_all(vm=False)
        a(f"s_add_u32 s{TAG}, s{TAG}, {hex(TAGK)}")
        self.stamp(1)

    def stats_ops(self):
        a = self.a
        o = [lambda: a.wait(vm=self.tok_row) or 1]
        for i in range(8):
            o.append(f"v_lshlrev_b32 v{100+2*i}, 16, v{140+i}")
            o.append(f"v_and_b32 v{101+2*i}, 0xffff0000, v{140+i}")
        o += [f"v_add_f32 v{120+i}, v{100+2*i}, v{101+2*i}" for i in range(8)]
        o += [f"v_add_f32 v{120+i}, v{120+i}, v{124+i}" for i in range(4)]
        o += ["v_add_f32 v120, v120, v121", "v_add_f32 v122, v122, v123", "v_add_f32 v120, v120, v122"]
        o += self.wave_sum(120)
        o += [f"v_readlane_b32 s{T5}, v120, 63", f"v_mov_b32 v121, {fbits(1/640)}", f"v_mul_f32 v121, s{T5}, v121"]
        o += [f"v_sub_f32 v{100+i}, v{100+i}, v121" for i in range(16)]
        o += ["v_mul_f32 v122, v100, v100", "v_mul_f32 v123, v108, v108"]
        for i in range(1, 8):
            o += [f"v_fmac_f32 v122, v{100+i}, v{100+i}", f"v_fmac_f32 v123, v{108+i}, v{108+i}"]
        o += [f"v_cndmask_b32 v123, 0, v123, {s(M3,2)}", "v_add_f32 v120, v122, v123"]
        o += self.wave_sum(120)
        o += [f"v_readlane_b32 s{T5}, v120, 63", f"v_mov_b32 v122, {fbits(1/640)}", f"v_mul_f32 v122, s{T5}, v122"]
        o += ["v_cvt_pk_bf16_f32 v124, v121, v122", "v_and_b32 v125, 0xffff0000, v124", "v_lshlrev_b32 v124, 16, v124",
              f"v_add_f32 v125, {fbits(1e-5)}, v125", "v_cvt_pk_bf16_f32 v125, v125, v125", "v_lshlrev_b32 v125, 16, v125",
              "v_sqrt_f32 v125, v125", f"v_mov_b32 v126, s{TAG}", "v_cvt_pk_bf16_f32 v125, v125, v125",
              f"v_mov_b32 v127, s{TAG}", "v_lshlrev_b32 v125, 16, v125",
              f"buffer_store_dwordx4 v[124:127], v254, {s(S_WS,4)}, s{SD_A} offen sc1"]
        return o

    def wave_sum(self, r):
        o = [f"v_add_f32_dpp v{r}, v{r}, v{r} row_shr:{sh} row_mask:0xf bank_mask:0xf bound_ctrl:1" for sh in (1, 2, 4, 8)]
        o.append(f"v_add_f32_dpp v{r}, v{r}, v{r} row_bcast:15 row_mask:0xa bank_mask:0xf")
        o.append(f"v_add_f32_dpp v{r}, v{r}, v{r} row_bcast:31 row_mask:0xc bank_mask:0xf")
        return o

    def setup_b_items(self):
        a = self.a
        L3, LD = a.new_label("bpack"), a.new_label("bdone")
        a(f"s_mov_b32 s{S_B0+3}, 0x20000")
        a(f"s_mov_b32 s{S_B1+3}, 0x20000")
        a(f"s_cmp_ge_u32 s{CG}, 11")
        a(f"s_cbranch_scc1 {L3}")
        for b in (S_B0, S_B1):
            a(f"s_mov_b32 s{b}, s{S_W1}")
            a(f"s_mov_b32 s{b+1}, s{S_W1+1}")
            a(f"s_mov_b32 s{b+2}, s{S_W1+2}")
        a("v_mov_b32 v241, v251")
        a(f"s_mov_b32 s{SB0}, 0")
        a(f"s_mov_b32 s{SB1}, 0")
        a(f"s_mov_b32 s{PKO0}, {hex(OOB)}")
        a(f"s_mov_b32 s{PKO1}, {hex(OOB)}")
        a(f"s_mov_b32 s{PKF0}, {hex(OOB)}")
        a(f"s_mov_b32 s{PKF1}, {hex(OOB)}")
        a(f"s_branch {LD}")
        a.label(L3)
        a("v_mul_u32_u24 v9, 0x500, v7")
        a("v_add_u32 v241, v9, v8")
        a(f"s_sub_u32 s{T0}, s{CG}, 11")
        a(f"s_lshl_b32 s{T0}, s{T0}, 4")
        a(f"s_add_u32 s{T0}, s{T0}, s{RB}")
        a(f"s_lshl_b32 s{T0}, s{T0}, 3")
        a(f"s_add_u32 s{T0}, s{T0}, s{W}")
        for b, sb, pko, pkf in ((S_B0, SB0, PKO0, PKF0), (S_B1, SB1, PKO1, PKF1)):
            a(f"s_mul_i32 s{T1}, s{T0}, 886")
            a(f"s_lshr_b32 s{T1}, s{T1}, 16")
            a(f"s_mul_i32 s{T2}, s{T1}, 74")
            a(f"s_sub_u32 s{T2}, s{T0}, s{T2}")
            a(f"s_mul_i32 s{T3}, s{T2}, 40")
            a(f"s_lshl_b32 s{T5}, s{T1}, 2")
            a(f"s_add_u32 s{T3}, s{T3}, s{T5}")
            a(f"s_lshl_b32 s{T3}, s{T3}, 10")
            a(f"s_add_u32 s{pko}, s{T3}, {hex(WP)}")
            a(f"s_lshr_b32 s{T3}, s{T0}, 3")
            a(f"s_lshl_b32 s{T3}, s{T3}, 7")
            a(f"s_and_b32 s{T5}, s{T0}, 7")
            a(f"s_lshl_b32 s{T5}, s{T5}, 2")
            a(f"s_add_u32 s{T3}, s{T3}, s{T5}")
            a(f"s_add_u32 s{pkf}, s{T3}, {hex(FP)}")
            a(f"s_sub_u32 s{T3}, s{T2}, 54")
            a(f"s_cselect_b32 s{T2}, s{T2}, s{T3}")
            a(f"s_cselect_b32 s{b}, s94, s92")
            a(f"s_cselect_b32 s{b+1}, s95, s93")
            a(f"s_mov_b32 s{b+2}, {hex(640*1280)}")
            a(f"s_cselect_b32 s{b+2}, {hex(1728*1280)}, s{b+2}")
            a(f"s_mul_i32 s{T2}, s{T2}, {32*1280}")
            a(f"s_lshl_b32 s{T1}, s{T1}, 7")
            a(f"s_add_u32 s{sb}, s{T2}, s{T1}")
            if b == S_B0:
                a(f"s_add_u32 s{T0}, s{T0}, 640")
        a(f"s_cmp_lt_u32 s{T0}, 740")
        a(f"s_cselect_b32 s{SB1}, s{SB1}, {hex(OOB)}")
        a(f"s_cselect_b32 s{PKO1}, s{PKO1}, {hex(OOB)}")
        a(f"s_cselect_b32 s{PKF1}, s{PKF1}, {hex(OOB)}")
        a.label(LD)

    def item_ops(self, it):
        cell = it % 9
        ops = []
        if it < 20 and it % 2 == 0:
            ops += [f"s_add_u32 m0, s{W2048}, {cell*CELL}",
                    f"s_lshl_b32 s{T0}, s{KB1}, 7",
                    f"s_add_u32 s{T0}, s{T0}, s{SXB}",
                    f"buffer_load_dwordx4 v248, {s(S_X,4)}, s{T0} offen lds",
                    f"buffer_load_dwordx4 v249, {s(S_X,4)}, s{T0} offen offset:1024 lds"]
        elif it < 20:
            ops += [f"s_mul_i32 s{T0}, s{KB1}, {64*3840}",
                    f"s_add_u32 s{T0}, s{T0}, s{SWB}",
                    f"s_add_u32 s{T1}, s{T0}, {16*3840-1024}",
                    f"s_add_u32 m0, s{W2048}, {cell*CELL}",
                    f"s_add_u32 s{KB1}, s{KB1}, 1",
                    f"buffer_load_dwordx4 v250, {s(S_WA,4)}, s{T0} offen lds",
                    f"buffer_load_dwordx4 v250, {s(S_WA,4)}, s{T1} offen offset:1024 lds",
                    (f"s_cmp_eq_u32 s{KB1}, 10", f"s_cselect_b32 s{KB1}, 0, s{KB1}")]
        elif it < 25:
            ops += [f"s_mul_i32 s{T0}, s{KB2}, {64*3456}",
                    f"s_add_u32 s{T0}, s{T0}, s{SPB}",
                    f"s_add_u32 s{T1}, s{T0}, {16*3456-1024}",
                    f"s_add_u32 m0, s{W2048}, {cell*CELL}",
                    f"s_add_u32 s{KB2}, s{KB2}, 2",
                    f"buffer_load_dwordx4 v251, {s(S_W1,4)}, s{T0} offen lds",
                    f"buffer_load_dwordx4 v251, {s(S_W1,4)}, s{T1} offen offset:1024 lds",
                    (f"s_sub_u32 s{T0}, s{KB2}, 10", f"s_cselect_b32 s{KB2}, s{KB2}, s{T0}")]
        else:
            m = it - 25
            srd = S_B0 if m < 2 else S_B1
            pk = (f"s{SB0}" if m < 2 else f"s{SB1}") if m < 4 else None
            ops += [f"s_mul_i32 s{T0}, s{KB2}, {64*3456}",
                    f"s_add_u32 s{T0}, s{T0}, s{SPB}",
                    f"s_add_u32 s{T0}, s{T0}, {16*128}"]
            if pk:
                ops += [f"s_add_u32 s{T2}, {pk}, {(m & 1) * 4 * 1280}"]
            else:
                ops += [f"s_mov_b32 s{T2}, {hex(OOB)}"]
            ops += [f"s_mov_b32 s{T1}, {16*1280-1024}",
                    (f"s_cmp_lt_u32 s{CG}, 11", f"s_cselect_b32 s{T0}, s{T0}, s{T2}",
                     f"s_cselect_b32 s{T1}, {16*3456-1024}, s{T1}"),
                    f"s_add_u32 s{T1}, s{T1}, s{T0}",
                    f"s_add_u32 m0, s{W2048}, {cell*CELL}",
                    f"s_add_u32 s{KB2}, s{KB2}, 2",
                    f"buffer_load_dwordx4 v{self.VB_OFF}, {s(srd,4)}, s{T0} offen lds",
                    f"buffer_load_dwordx4 v{self.VB_OFF}, {s(srd,4)}, s{T1} offen offset:1024 lds",
                    (f"s_sub_u32 s{T0}, s{KB2}, 10", f"s_cselect_b32 s{KB2}, s{KB2}, s{T0}")]
        res = []
        a = self.a
        for o in ops:
            if isinstance(o, tuple):
                res.append(lambda o=o: [a(x) for x in o] and len(o))
            else:
                res.append(o)

        def note():
            self.item_tok[it] = a.vm_tok()
            return 0
        res.append(note)
        return res

    def issue_item(self, it):
        for o in self.item_ops(it):
            if callable(o):
                o()
            else:
                self.a(o)

    VB_OFF = 241

    def xreg(self, st, ks, tt):
        return ((st * 2 + ks) * 2 + tt) * 4

    def bump(self, regs, old, new):
        if old != new:
            for r in regs:
                self.a(f"v_add_u32 v{r}, {hex(((new - old) * 65536) & 0xffffffff)}, v{r}")

    def ev(self, n):
        if n < 80:
            st, ks, t = n >> 3, (n >> 2) & 1, n & 3
            return dict(p=1, st=st, ks=ks, t=t, buf=192 + 4 * (n & 7), acc=160 + 8 * t, cs=t == 0,
                        first=n < 4, it=2 * st + 1, head=(n & 7) == 0)
        e = (n - 80) % 40
        m, q, t = e >> 3, (e >> 1) & 3, e & 1
        return dict(p=2, st=2 * m + (q >> 1), ks=q & 1, t=t, q=q, buf=192 + 4 * (n & 3),
                    acc=(208 if n < 120 else 160) + 8 * t, cs=t == 0 and (q & 1) == 0, first=e < 2,
                    it=20 + ((n - 80) >> 3), head=(e & 7) == 0)

    def prev_user(self, n):
        return n - 8 if n < 84 else n - 4

    def ev_read(self, n):
        a = self.a
        e = self.ev(n)
        cell = e["it"] % 9
        if e["head"]:
            if n == 80:
                self.p2_addresses()
            if e["p"] == 1:
                cx = (e["it"] - 1) % 9
                self.bump([246, 247], self.xwin, cx >> 2)
                self.xwin = cx >> 2
            else:
                self.bump([242, 243, 244, 245], self.wwin[0], cell >> 2)
                self.wwin = [cell >> 2] * 4
            while self.dmaq:
                self.dma_tick(force=True)
            a.wait(vm=self.item_tok[e["it"]], lg=self.tok_csw)
            a("s_barrier")
            if n in self.after_barrier:
                self.after_barrier[n]()
        if e["p"] == 1:
            t = e["t"]
            if t == 0:
                ox = (((e["it"] - 1) % 9) & 3) * CELL
                for tt in range(2):
                    a(f"ds_read_b128 {v(self.xreg(e['st'],e['ks'],tt),4)}, v{246+e['ks']} offset:{ox+tt*2048}")
            self.bump([242 + t], self.wwin[t], cell >> 2)
            self.wwin[t] = cell >> 2
            for hh in range(2):
                a(f"ds_read_b64_tr_b16 {v(e['buf']+2*hh,2)}, v{242+t} offset:{(cell&3)*CELL+hh*2048}")
            if n < 76:
                a(f"v_xor_b32 v{242+t}, 0x1000, v{242+t}")
        else:
            off = (cell & 3) * CELL + (e["q"] >> 1) * 8192
            for hh in range(2):
                a(f"ds_read_b64_tr_b16 {v(e['buf']+2*hh,2)}, v{242+2*e['ks']+e['t']} offset:{off+hh*2048}")
        self.rtok[n] = a.lg_tok()

    def dma_tick(self, force=False):
        a = self.a
        self.dmacnt -= 1
        if not self.dmaq or (self.dmacnt > 0 and not force):
            return 0
        self.dmacnt = self.opt["dmagap"]
        n = 0
        while self.dmaq:
            o = self.dmaq.pop(0)
            n += 1
            if callable(o):
                o()
            else:
                a(o)
                if o.startswith("buffer_load"):
                    break
        while self.dmaq and callable(self.dmaq[0]):
            self.dmaq.pop(0)()
        return n

    def ev_mfma(self, n, nfill):
        a = self.a
        e = self.ev(n)
        g = self.opt["wgran"]
        a.wait(lg=self.rtok[min(n | (g - 1), max(self.rtok))])
        for tt in range(2):
            d = e["acc"] + 4 * tt
            c = "0" if e["first"] else v(d, 4)
            a(f"v_mfma_f32_16x16x32_bf16 {v(d,4)}, {v(e['buf'],4)}, {v(self.xreg(e['st'],e['ks'],tt),4)}, {c}")
            if not self.dma_tick():
                a.fill(nfill)
        if e["cs"]:
            c = "0" if e["first"] else v(224, 4)
            a(f"v_mfma_f32_16x16x32_bf16 {v(224,4)}, {v(e['buf'],4)}, {v(228,4)}, {c}")
            if not self.dma_tick():
                a.fill(nfill)

    def stream(self, n0, n1, last_read, hooks, nfill):
        for n in range(n0, n1):
            if n in hooks:
                hooks[n]()
            self.ev_mfma(n, nfill(n))
            self.reads_after(n, last_read)

    def reads_after(self, n, last_read):
        while self.nread <= last_read and max(self.nread - self.look, self.prev_user(self.nread)) <= n:
            self.ev_read(self.nread)
            self.nread += 1

    def p2_addresses(self):
        a = self.a
        a("v_and_b32 v246, 0xffff, v239")
        a("v_lshrrev_b32 v247, 16, v239")
        a(f"s_lshr_b32 s{T5}, s{RG}, 1")
        a(f"s_lshl_b32 s{T5}, s{T5}, 12")
        a(f"v_add_u32 v246, s{T5}, v246")
        for t in range(2):
            a(f"s_lshr_b32 s{T5}, s{CT2+t}, 6")
            a(f"v_xor_b32 v255, s{T5}, v247")
            a(f"v_lshl_add_u32 v{242+t}, v255, 5, v246")
            a(f"v_xor_b32 v{244+t}, 0x1000, v{242+t}")
        self.wwin = [0] * 4

    def stats_load(self):
        a = self.a
        a(f"s_lshl_b32 s{T5}, s{RB}, 2")
        a(f"s_add_u32 s{T5}, s{T5}, s{RG}")
        a(f"s_lshl_b32 s{T5}, s{T5}, 9")
        a(f"s_add_u32 s{SD_A}, s{T5}, {hex(STATS)}")
        a("v_and_b32 v255, 0xf0, v252")
        a(f"buffer_load_dwordx3 v[232:234], v255, {s(S_WS,4)}, s{SD_A} offen sc1")
        a(f"buffer_load_dwordx3 v[236:238], v255, {s(S_WS,4)}, s{SD_A} offen offset:256 sc1")
        self.tok_stats = a.vm_tok()

    def cs1_write(self):
        a = self.a
        a(f"s_lshl_b32 s{T5}, s{U}, 8")
        a(f"s_add_u32 s{T5}, s{T5}, s{CT}")
        self.cs_write(T5, CS1)

    def cs2_write(self, base):
        a = self.a
        a(f"s_lshr_b32 s{T5}, s{RG}, 1")
        a(f"s_lshl_b32 s{T5}, s{T5}, 8")
        a(f"s_add_u32 s{T5}, s{T5}, s{CT2}")
        self.cs_write(T5, base)

    def gemm_common(self):
        a = self.a
        self.wwin, self.xwin, self.rtok, self.nread, self.look = [0] * 4, 0, {}, 0, self.opt["look"]
        self.tok_csw = 0
        self.dmaq, self.dmacnt = [], 0
        ab = self.after_barrier = {}

        def issue(items, pre=None, post=None):
            def f():
                if pre:
                    pre()
                assert not self.dmaq
                self.dmaq = [o for it in items for o in self.item_ops(it)]
                self.dmacnt = self.opt["dma0"]
                if post:
                    post()
            return f
        for st in range(10):
            ab[8 * st] = issue((2 * st + 4, 2 * st + 5))
        ab[0] = issue((4, 5), pre=lambda: self.stamp(2), post=lambda: a.add_fill(self.stats_ops()))
        ab[8 * self.opt["stats_step"]] = issue((2 * self.opt["stats_step"] + 4, 2 * self.opt["stats_step"] + 5), pre=self.stats_load)
        ab[80] = issue((24, 25), pre=lambda: self.stamp(3))
        ab[88] = issue((26, 27), post=lambda: a.add_fill([self.stats_check] + self.e1_ops()))
        ab[96] = issue((28, 29))
        while self.nread < self.look:
            self.ev_read(self.nread)
            self.nread += 1

        def qflag():
            a.flush()
            a.wait(vm=self.tok_q)
            self.flag(FQA, 255)
        hooks = {79: self.cs1_write}
        if self.opt.get("p1only"):
            self.stream(0, 72, 79, hooks, lambda n: 3)
            a.flush()
            return
        self.stream(0, 116, 119, hooks, lambda n: 3)
        qflag()
        self.ev_mfma(116, 0)

    def cs_write(self, soff, base):
        a = self.a
        a(f"v_add_u32 v255, s{soff}, v253")
        a("s_mov_b32 exec_lo, 0x00010001")
        a("s_mov_b32 exec_hi, 0x00010001")
        a(f"v_add_u32 v255, {base}, v255")
        a("ds_write_b128 v255, v[224:227]")
        self.tok_csw = a.lg_tok()
        a("s_mov_b64 exec, -1")

    def stats_check(self):
        a = self.a
        L, D, F = a.new_label("st"), a.new_label("stok"), a.new_label("stf")
        a.wait(vm=self.tok_stats)
        a(f"v_cmp_ne_u32 vcc, s{TAG}, v234")
        a(f"v_cmp_ne_u32 {s(M2,2)}, s{TAG}, v238")
        a(f"s_or_b64 vcc, vcc, {s(M2,2)}")
        a(f"s_cbranch_vccz {D}")
        st = a.state()
        a(f"s_mov_b32 s{SPIN}, {hex(self.opt['spin'])}")
        a("v_and_b32 v255, 0xf0, v252")
        a.label(L)
        a(f"buffer_load_dwordx3 v[232:234], v255, {s(S_WS,4)}, s{SD_A} offen sc1")
        a(f"buffer_load_dwordx3 v[236:238], v255, {s(S_WS,4)}, s{SD_A} offen offset:256 sc1")
        a("s_waitcnt vmcnt(0)")
        a(f"v_cmp_ne_u32 vcc, s{TAG}, v234")
        a(f"v_cmp_ne_u32 {s(M2,2)}, s{TAG}, v238")
        a(f"s_or_b64 vcc, vcc, {s(M2,2)}")
        a(f"s_cbranch_vccz {D}")
        a(f"s_sub_u32 s{SPIN}, s{SPIN}, 1")
        a(f"s_cbranch_scc0 {L}")
        self.fail(1, 235)
        a.set_state(st)
        a.label(D)
        a("v_rcp_f32 v234, v233")
        a("v_rcp_f32 v238, v237")
        a(f"v_mul_f32 v234, s{QSC}, v234")
        a(f"v_mul_f32 v238, s{QSC}, v238")
        return 3

    def e1_ops(self):
        a = self.a
        ops = []
        CSR = 246
        for t in range(4):
            b = 160 + 8 * t

            def rd(t=t):
                a(f"s_lshl_b32 s{T3}, s{U}, 8")
                a(f"s_add_u32 s{T3}, s{T3}, s{CT+t}")
                a(f"s_add_u32 s{T3}, s{T3}, {CS1}")
                a(f"v_add_u32 v255, s{T3}, v253")
                a(f"ds_read_b128 {v(CSR,4)}, v255")
                self.tok_cs = a.lg_tok()
                return 2
            ops.append(rd)
            ops.append(f"s_lshl_b32 s{T4}, s{CT+t}, 6")
            ops.append(f"s_add_u32 s{T4}, s{T4}, s{SQ}")
            ops.append(lambda: a.wait(lg=self.tok_cs) or 4)
            for tt in range(2):
                for r in range(4):
                    ops.append(f"v_fma_f32 v{b+4*tt+r}, -v{232+4*tt}, v{CSR+r}, v{b+4*tt+r}")
            for tt in range(2):
                for r in range(4):
                    ops.append(f"v_mul_f32 v{b+4*tt+r}, v{b+4*tt+r}, v{234+4*tt}")
            ops += self.pack_store(b, T4)
        ops.append(lambda: setattr(self, "tok_q", a.vm_tok()) or 0)
        return ops

    def pack_store(self, b, soff):
        ops = [f"v_cvt_pk_bf16_f32 v{b+i}, v{b+2*i}, v{b+2*i+1}" for i in range(4)]
        ops += [f"s_nop 0", f"v_permlane16_swap_b32 v{b}, v{b+2}", f"v_permlane16_swap_b32 v{b+1}, v{b+3}"]
        ops.append(f"buffer_store_dwordx4 {v(b,4)}, v252, {s(S_WS,4)}, s{soff} offen sc1")
        return ops

    def e2_ops(self, acc, csbase, sbase, tmp, tokname):
        a = self.a
        ops = []
        c0, c1, z = tmp, tmp + 4, tmp + 8
        for t in range(2):
            b = acc + 8 * t

            def rd(t=t):
                a(f"s_add_u32 s{T3}, s{CT2+t}, {csbase}")
                a(f"v_add_u32 v255, s{T3}, v253")
                a(f"ds_read_b128 {v(c0,4)}, v255")
                a(f"ds_read_b128 {v(c1,4)}, v255 offset:256")
                self.tok_cs = a.lg_tok()
                return 3
            ops.append(rd)
            ops.append(f"s_lshl_b32 s{T4}, s{CT2+t}, 6")
            ops.append(f"s_add_u32 s{T4}, s{T4}, s{sbase}")
            ops.append(lambda: a.wait(lg=self.tok_cs) or 4)
            ops += [f"v_add_f32 v{c0+r}, v{c0+r}, v{c1+r}" for r in range(4)]
            for tt in range(2):
                x = b + 4 * tt
                ops += [f"v_fma_f32 v{x+r}, -v{232+4*tt}, v{c0+r}, v{x+r}" for r in range(4)]
                ops += [f"v_mul_f32 v{z+r}, v{x+r}, v{234+4*tt}" for r in range(4)]
                ops += [f"v_exp_f32 v{z+r}, v{z+r}" for r in range(4)]
                ops += [f"v_fma_f32 v{z+r}, v{z+r}, v{233+4*tt}, v{233+4*tt}" for r in range(4)]
                ops += [f"v_rcp_f32 v{z+r}, v{z+r}" for r in range(4)]
                ops += [f"v_mul_f32 v{x+r}, v{x+r}, v{z+r}" for r in range(4)]
            ops += self.pack_store(b, T4)
        ops.append(lambda: setattr(self, tokname, a.vm_tok()) or 0)
        return ops

    def silu_scale_ops(self):
        return ["v_rcp_f32 v234, v233", "v_rcp_f32 v238, v237",
                f"v_mul_f32 v234, {fbits(-LOG2E)}, v234", f"v_mul_f32 v238, {fbits(-LOG2E)}, v238"]

    def pack_jobs(self):
        a = self.a
        a("v_and_b32 v246, 0xffff, v239")
        a("v_lshrrev_b32 v247, 16, v239")
        a(f"v_add_u32 v246, s{W2048}, v246")
        for ct in range(4):
            a(f"v_xor_b32 v255, {ct}, v247")
            a(f"v_lshl_add_u32 v{160+ct}, v255, 5, v246")
            a(f"v_add_u32 v{164+ct}, {7*CELL}, v{160+ct}")
        a("v_mbcnt_lo_u32_b32 v168, -1, 0")
        a("v_mbcnt_hi_u32_b32 v168, -1, v168")
        a("v_lshlrev_b32 v168, 4, v168")
        a.wait(vm=self.item_tok[28])
        for job in range(2):
            for ct in range(4):
                for hh in range(2):
                    adr = (164 if job == 0 else 160) + ct
                    a(f"ds_read_b64_tr_b16 {v(job*16+4*ct+2*hh,2)}, v{adr} offset:{hh*CELL}")
        for job in range(2):
            a.wait(lg=a.lg_tok() - 8 * (1 - job))
            for ct in range(4):
                a(f"buffer_store_dwordx4 {v(job*16+4*ct,4)}, v168, {s(S_WS,4)}, s{PKO0+job} offen offset:{ct*1024} sc1")
        self.tok_p = a.vm_tok()

    def gather_setup(self):
        a = self.a
        a(f"s_min_u32 s{G1}, s{W}, 6")
        a(f"s_add_u32 s{G0}, s{G1}, 2")
        a(f"s_mul_i32 s{G0}, s{G0}, 86")
        a(f"s_lshr_b32 s{G0}, s{G0}, 8")
        a(f"s_mul_i32 s{G2}, s{G0}, 3")
        a(f"s_sub_u32 s{G1}, s{G1}, s{G2}")
        a(f"s_add_u32 s{G1}, s{G1}, 2")
        a(f"s_add_u32 s{G2}, s{RB}, s{G1}")
        a(f"s_sub_u32 s{G2}, s{G2}, 2")
        a(f"s_cselect_b32 s{G3}, 1, 0")
        a(f"s_cselect_b32 s{G2}, s{RB}, s{G2}")
        a("v_mbcnt_lo_u32_b32 v246, -1, 0")
        a("v_mbcnt_hi_u32_b32 v246, -1, v246")
        a(f"s_mul_i32 s{G4}, s{HP}, 5")
        a("v_and_b32 v247, 4, v246")
        a(f"v_add_u32 v247, s{G4}, v247")
        a("v_lshrrev_b32 v247, 3, v247")
        a(f"s_mul_i32 s{G5}, s{G0}, 10")
        a(f"s_lshl_b32 s{SPIN}, s{G2}, 5")
        a(f"s_add_u32 s{G5}, s{G5}, s{SPIN}")
        a(f"v_add_u32 v247, s{G5}, v247")
        a("v_lshlrev_b32 v247, 7, v247")
        a("v_and_b32 v255, 3, v246")
        a("v_lshl_add_u32 v247, v255, 2, v247")
        a(f"v_add_u32 v247, {hex(FQ)}, v247")
        a("v_lshlrev_b32 v246, 4, v246")
        a(f"s_mul_i32 s{G5}, s{G2}, 240")
        a(f"s_add_u32 s{G4}, s{G4}, s{G5}")
        a(f"s_mul_i32 s{G5}, s{G0}, 80")
        a(f"s_add_u32 s{G4}, s{G4}, s{G5}")
        a(f"s_lshl_b32 s{G4}, s{G4}, 11")
        a(f"s_add_u32 s{G4}, s{G4}, {hex(QKV)}")
        a(f"s_cmp_eq_u32 s{G3}, 1")
        a(f"s_cselect_b32 s{G4}, {hex(OOB)}, s{G4}")
        a(f"s_lshl_b32 s{G1}, s{G1}, 11")
        a(f"s_mov_b32 s{G2}, {VB}")
        a(f"s_mov_b32 s{G3}, {VSTR}")
        a(f"s_cmp_eq_u32 s{G0}, 1")
        a(f"s_cselect_b32 s{G2}, {KB}, s{G2}")
        a(f"s_cselect_b32 s{G3}, {KSTR}, s{G3}")
        a(f"s_add_u32 s{G2}, s{G2}, s{G1}")
        a(f"s_cmp_eq_u32 s{G0}, 0")
        a(f"s_cselect_b32 s{G2}, {QB}, s{G2}")
        a(f"s_cselect_b32 s{G3}, 2048, s{G3}")
        a(f"s_cmp_eq_u32 s{W}, 7")
        a(f"s_cselect_b32 s{G2}, {QB+10240}, s{G2}")
        a(f"s_cselect_b32 s{G3}, 0, s{G3}")
        a(f"s_cselect_b32 s{G4}, {hex(OOB)}, s{G4}")
        self.tok_gp = self.poll_issue(247, 248)

    def gather_go(self):
        a = self.a
        self.poll_check(self.tok_gp, 247, 248, 2)
        ops = []
        for o in range(5):
            ops += [f"s_mov_b32 m0, s{G2}", f"s_add_u32 s{G2}, s{G2}, s{G3}",
                    f"buffer_load_dwordx4 v246, {s(S_WS,4)}, s{G4} offen sc1 lds",
                    f"buffer_load_dwordx4 v246, {s(S_WS,4)}, s{G4} offen offset:1024 sc1 lds",
                    f"s_add_u32 s{G4}, s{G4}, 2048"]
        ops.append(lambda: setattr(self, "tok_g", a.vm_tok()) or 0)
        a.fillers[0:0] = ops

    KF, VF, OO, QF, CD, CO, MX = 136, 152, 168, 200, 216, 220, 224
    KA, VX, VY, STZ = 228, 230, 232, 234

    def OX(self, e, T):
        return self.OO + 16 * e + 4 * T

    def OY(self, e, T):
        return self.OO + 16 * e + 8 + 4 * T

    def att_setup(self):
        a = self.a
        KA, VX, VY, QF, CD, CO, STZ = self.KA, self.VX, self.VY, self.QF, self.CD, self.CO, self.STZ
        t0, t1, t2, t3, QA = 100, 101, 102, 103, 104
        u0, u1, u2, u3, u4 = 105, 106, 107, 108, 109
        if self.opt["prio"]:
            a(f"s_setprio {self.opt['prio']}")
        a(f"v_mbcnt_lo_u32_b32 v{t0}, -1, 0")
        a(f"v_mbcnt_hi_u32_b32 v{t0}, -1, v{t0}")
        a(f"s_lshl_b32 s{T0}, s{W}, 9")
        a(f"v_lshrrev_b32 v{t1}, 4, v{t0}")
        a(f"v_and_b32 v{t2}, 15, v{t0}")
        a(f"v_lshl_add_u32 v{t3}, v{t2}, 4, s{T0}")
        a(f"v_min_u32 v{u0}, 2, v{t1}")
        a(f"v_lshl_add_u32 v{QA}, v{u0}, 11, v{t3}")
        a(f"v_add_u32 v{QA}, {QB}, v{QA}")
        a(f"ds_read_b128 {v(QF,4)}, v{QA}")
        a(f"ds_read_b128 {v(QF+4,4)}, v{QA} offset:256")
        a(f"v_cmp_eq_u32 {s(M3,2)}, 3, v{t1}")
        a(f"v_cmp_gt_u32 vcc, 2, v{t1}")
        a(f"v_mul_u32_u24 v{u1}, {KSTR}, v{u0}")
        a(f"v_add_u32 v{u1}, {KB}, v{u1}")
        a(f"v_mov_b32 v{u2}, {MP}")
        a(f"v_cndmask_b32 v{u1}, v{u1}, v{u2}, {s(M3,2)}")
        a(f"v_add_u32 v{KA}, v{u1}, v{t3}")
        self.ktok = {}
        for p in range(2):
            self.kread(p)
        a(f"v_mov_b32 v{u1}, {3*2048}")
        a(f"v_cndmask_b32 v{u1}, 0, v{u1}, vcc")
        a(f"v_add_u32 v{QA}, v{QA}, v{u1}")
        a(f"ds_read_b128 {v(QF+8,4)}, v{QA}")
        a(f"ds_read_b128 {v(QF+12,4)}, v{QA} offset:256")
        tokq = a.lg_tok()
        a(f"v_mov_b32 v{u2}, {3*KSTR}")
        a(f"v_cndmask_b32 v{u2}, 0, v{u2}, vcc")
        a(f"v_add_u32 v{KA+1}, v{KA}, v{u2}")
        a(f"v_mov_b32 v{u1}, {hex(OOB)}")
        a(f"v_cndmask_b32 v{STZ}, v{u1}, v252, vcc")
        a(f"v_cmp_eq_u32 {s(M2,2)}, 2, v{t1}")
        a(f"v_cmp_eq_u32 {s(M0L,2)}, 0, v{t1}")
        a(f"v_lshrrev_b32 v{u1}, 2, v{t0}")
        a(f"v_lshl_add_u32 v{u1}, v{u1}, 4, s{T0}")
        a(f"v_and_b32 v{u2}, 3, v{t0}")
        a(f"v_lshrrev_b32 v{u3}, 1, v{u2}")
        a(f"v_mul_u32_u24 v{u3}, {VSTR}, v{u3}")
        a(f"v_and_b32 v{u4}, 1, v{u2}")
        a(f"v_lshl_add_u32 v{u3}, v{u4}, 3, v{u3}")
        a(f"v_add_u32 v{u3}, v{u3}, v{u1}")
        a(f"v_add_u32 v{VX}, {VB}, v{u3}")
        a(f"v_add_u32 v{VX+1}, {VB+3*VSTR}, v{u3}")
        a(f"v_mov_b32 v{u3}, {OB}")
        a(f"v_add_u32 v{u4}, {VB+2*VSTR}, v{u1}")
        a(f"v_cmp_eq_u32 vcc, 0, v{u2}")
        a(f"v_cndmask_b32 v{VY}, v{u3}, v{u4}, vcc")
        a(f"v_add_u32 v{u4}, 8, v{u4}")
        a(f"v_cmp_eq_u32 vcc, 1, v{u2}")
        a(f"v_cndmask_b32 v{VY+1}, v{u3}, v{u4}, vcc")
        self.vtok = {}
        self.vread(0)
        a(f"v_lshlrev_b32 v{u1}, 2, v{t1}")
        a(f"v_mov_b32 v{u2}, {fbits(-1e30)}")
        for r in range(4):
            a(f"v_add_u32 v{u3}, {r}, v{u1}")
            a(f"v_cmp_gt_u32 vcc, v{u3}, v{t2}")
            a(f"v_cndmask_b32 v{CD+r}, 0, v{u2}, vcc")
            a(f"v_sub_f32 v{CO+r}, v{u2}, v{CD+r}")
        a(f"s_mul_i32 s{T1}, s{RB}, 296")
        a(f"s_mul_i32 s{T2}, s{HP}, 5")
        a(f"s_add_u32 s{T1}, s{T1}, s{T2}")
        a(f"s_add_u32 s{T1}, s{T1}, 216")
        a(f"s_lshl_b32 s{T1}, s{T1}, 11")
        a(f"s_add_u32 s{SQ}, s{T1}, {hex(ACT)}")
        a.wait(lg=tokq)
        a(f"s_or_b64 vcc, {s(M2,2)}, {s(M3,2)}")
        a(f"v_mov_b32 v{u1}, 0x3f80")
        for T in range(2):
            q = QF + 4 * T
            a(f"v_cndmask_b32 v{q}, v{q}, v{u1}, {s(M3,2)}")
            a(f"v_cndmask_b32 v{q+1}, v{q+1}, 0, {s(M3,2)}")
            a(f"v_cndmask_b32 v{q+2}, v{q+2}, 0, vcc")
            a(f"v_cndmask_b32 v{q+3}, v{q+3}, 0, vcc")
        for T in range(2):
            q = QF + 8 + 4 * T
            a(f"v_cndmask_b32 v{q}, v{q}, 0, {s(M2,2)}")
            a(f"v_cndmask_b32 v{q+1}, v{q+1}, 0, vcc")
            a(f"v_cndmask_b32 v{q}, v{q}, v{u1}, {s(M3,2)}")
            a(f"v_cndmask_b32 v{q+2}, v{q+2}, 0, {s(M3,2)}")
            a(f"v_cndmask_b32 v{q+3}, v{q+3}, 0, {s(M3,2)}")

    def kread(self, P):
        a = self.a
        e, p = divmod(P, 9)
        for i in range(2):
            a(f"ds_read_b128 {v(self.KF+8*(P&1)+4*i,4)}, v{self.KA+e} offset:{(2*p+i)*256}")
        self.ktok[P] = a.lg_tok()

    def vread(self, P):
        a = self.a
        e, p = divmod(P, 9)
        b = self.VF + 8 * (P & 1)
        for i in range(2):
            a(f"ds_read_b64_tr_b16 {v(b+2*i,2)}, v{self.VX+e} offset:{(2*p+i)*256}")
        for i in range(2):
            a(f"ds_read_b64_tr_b16 {v(b+4+2*i,2)}, v{self.VY+e} offset:{(2*p+i)*256}")
        self.vtok[P] = a.lg_tok()

    @staticmethod
    def tiles(p, T):
        return [t for t in (2 * p, 2 * p + 1) if 0 <= t - T <= 16]

    def qk_op(self, e, T, t, dst, kf):
        rel = t - T
        c = v(self.CO, 4) if rel == 0 else v(self.CD, 4) if rel == 16 else "0"
        return f"v_mfma_f32_16x16x32_bf16 {v(dst,4)}, {v(kf,4)}, {v(self.QF+8*e+4*T,4)}, {c}"

    def pv_ops(self, e, p, T, b, vb):
        tl = self.tiles(p, T)
        o = []
        for xy, acc in ((0, self.OX(e, T)), (4, self.OY(e, T))):
            c = v(acc, 4) if p > 0 else "0"
            if len(tl) == 2:
                o.append(f"v_mfma_f32_16x16x32_bf16 {v(acc,4)}, {v(vb+xy,4)}, {v(b,4)}, {c}")
            else:
                h = 2 * (tl[0] & 1)
                o.append(f"v_mfma_f32_16x16x16_bf16 {v(acc,4)}, {v(vb+xy+h,2)}, {v(b,2)}, {c}")
        return o

    def att_fast(self):
        a = self.a
        SB = lambda P, T: 16 * (P & 1) + 8 * T

        def qk(P, T):
            e, p = divmod(P, 9)
            return [self.qk_op(e, T, t, SB(P, T) + 4 * i, self.KF + 8 * (P & 1) + 4 * (t & 1))
                    for i, t in enumerate(self.tiles(p, T))]

        def pv(P, T):
            e, p = divmod(P, 9)
            return self.pv_ops(e, p, T, SB(P, T), self.VF + 8 * (P & 1))
        a.wait(lg=self.ktok[0])
        for T in range(2):
            for o in qk(0, T):
                a(o)
        for P in range(18):
            e, p = divmod(P, 9)
            for T in range(2):
                side = []
                prev = (P - 1, 1) if T == 0 else (P, 0)
                if prev[0] >= 0:
                    side.append(lambda prev=prev: a.wait(lg=self.vtok[prev[0]]))
                    side += pv(*prev)
                if T == 0 and P >= 1 and P + 1 < 18:
                    side.append(lambda P=P: self.vread(P + 1))
                if P + 1 < 18:
                    side.append(lambda P=P: a.wait(lg=self.ktok[P + 1]))
                    side += qk(P + 1, T)
                if T == 1 and P == 0:
                    side.append(lambda: self.vread(1))
                if T == 1 and P + 3 < 18 + 1 and P + 2 < 18 and False:
                    pass
                if T == 0 and P + 2 < 18:
                    side.insert(0, lambda P=P: self.kread(P + 2))
                if P == 4 and T == 0:
                    side.append(lambda: (a.wait(vm=self.tok_hb), self.flag(self.hb_flag, 235)))
                b = SB(P, T)
                n = 4 * len(self.tiles(p, T))
                val = [f"v_exp_f32 v{b+i}, v{b+i}" for i in range(n)]
                cv = [f"v_cvt_pk_bf16_f32 v{b+i}, v{b+2*i}, v{b+2*i+1}" for i in range(n // 2)]
                seq = val[:3]
                for i in range(3, n):
                    seq.append(val[i])
                seq += cv
                k = 0
                for i, o in enumerate(seq):
                    a(o)
                    if i >= 1 and side:
                        f = side.pop(0)
                        while callable(f):
                            f()
                            f = side.pop(0) if side else None
                        if f:
                            a(f)
                    a.fill(0 if side else 1)
                for f in side:
                    f() if callable(f) else a(f)
            if P == 9:
                a.add_fill(self.att_out_ops(0))
        a.wait(lg=self.vtok[17])
        for o in pv(17, 1):
            a(o)
        a.flush()

    def att_sum_ops(self, e):
        o = []
        t = 236 + 4 * e
        for T in range(2):
            o += [f"v_mov_b32 v{t+2*T}, v{self.OY(e,T)}", f"v_mov_b32 v{t+2*T+1}, v{self.OY(e,T)}"]
        o.append("s_nop 0")
        o += [f"v_permlane32_swap_b32 v{t+2*T}, v{t+2*T+1}" for T in range(2)]
        return o

    def att_out_ops(self, e):
        a = self.a
        t = 236 + 4 * e
        o = self.att_sum_ops(e)
        o += [f"v_rcp_f32 v{t+2*T}, v{t+2*T+1}" for T in range(2)]
        for T in range(2):
            o += [f"v_mul_f32 v{self.OX(e,T)+r}, v{self.OX(e,T)+r}, v{t+2*T}" for r in range(4)]
        for T in range(2):
            o += [f"v_mul_f32 v{self.OY(e,T)+r}, v{self.OY(e,T)+r}, v{t+2*T}" for r in range(4)]
        x, y = self.OX(e, 0), self.OY(e, 0)
        o += [f"v_cvt_pk_bf16_f32 v{x+i}, v{x+2*i}, v{x+2*i+1}" for i in range(4)]
        o += [f"v_cvt_pk_bf16_f32 v{y+i}, v{y+2*i}, v{y+2*i+1}" for i in range(4)]
        o += [f"v_permlane16_swap_b32 v{x}, v{x+2}", f"v_permlane16_swap_b32 v{x+1}, v{x+3}",
              f"s_add_u32 s{T1}, s{SQ}, {e*3*2048}",
              f"buffer_store_dwordx4 {v(x,4)}, v252, {s(S_WS,4)}, s{T1} offen sc1"]
        if e == 1:
            y0 = self.OY(0, 0)
            o += [f"v_cndmask_b32 v{y+i}, v{y+i}, v{y0+i}, {s(M0L,2)}" for i in range(4)]
            o += [f"s_add_u32 s{T1}, s{SQ}, {2*2048}",
                  f"v_permlane16_swap_b32 v{y}, v{y+2}", f"v_permlane16_swap_b32 v{y+1}, v{y+3}",
                  f"buffer_store_dwordx4 {v(y,4)}, v{self.STZ}, {s(S_WS,4)}, s{T1} offen sc1"]
        return o

    def att_true_max(self):
        a = self.a
        S = lambda T, t: (0 if T == 0 else 64) + 4 * t
        KF, MX = self.KF, self.MX
        for e in range(2):
            ktok = {}
            for t in range(2):
                a(f"ds_read_b128 {v(KF+4*(t%3),4)}, v{self.KA+e} offset:{t*256}")
                ktok[t] = a.lg_tok()
            pend, seen = [], [0, 0]

            def take_max(T, t):
                b, m = S(T, t), MX + 2 * T
                if seen[T] == 0:
                    a(f"v_max_f32 v{m}, v{b}, v{b+1}")
                    a(f"v_max_f32 v{m+1}, v{b+2}, v{b+3}")
                else:
                    a(f"v_max3_f32 v{m}, v{b}, v{b+1}, v{m}")
                    a(f"v_max3_f32 v{m+1}, v{b+2}, v{b+3}, v{m+1}")
                seen[T] += 1
            for t in range(18):
                if t + 2 < 18:
                    a(f"ds_read_b128 {v(KF+4*((t+2)%3),4)}, v{self.KA+e} offset:{(t+2)*256}")
                    ktok[t + 2] = a.lg_tok()
                a.wait(lg=ktok[t])
                for T in range(2):
                    if 0 <= t - T <= 16:
                        a(self.qk_op(e, T, t, S(T, t), KF + 4 * (t % 3)))
                        pend.append((T, t))
                        if len(pend) > 3:
                            take_max(*pend.pop(0))
                if e == 0 and t == 8 and not self.opt["fast"]:
                    a.wait(vm=self.tok_hb)
                    self.flag(self.hb_flag, 235)
            self.vread(9 * e)
            while pend:
                take_max(*pend.pop(0))
            for sw in ("v_permlane16_swap_b32", "v_permlane32_swap_b32", None):
                for T in range(2):
                    a(f"v_max_f32 v{MX+2*T}, v{MX+2*T}, v{MX+2*T+1}")
                if sw:
                    for T in range(2):
                        a(f"v_mov_b32 v{MX+2*T+1}, v{MX+2*T}")
                    for T in range(2):
                        a(f"{sw} v{MX+2*T}, v{MX+2*T+1}")
            defer = []
            for p in range(9):
                P = 9 * e + p
                for T in range(2):
                    tl = self.tiles(p, T)
                    b, n = S(T, tl[0]), 4 * len(tl)
                    for i in range(n):
                        a(f"v_sub_f32 v{b+i}, v{b+i}, v{MX+2*T}")
                        if i >= 1:
                            a(f"v_exp_f32 v{b+i-1}, v{b+i-1}")
                        if i == 2:
                            for f in defer:
                                f()
                            defer = []
                            if T == 0 and p + 1 < 9:
                                self.vread(P + 1)
                    a(f"v_exp_f32 v{b+n-1}, v{b+n-1}")
                    for i in range(n // 2):
                        a(f"v_cvt_pk_bf16_f32 v{b+i}, v{b+2*i}, v{b+2*i+1}")

                    def pv(p=p, P=P, T=T, b=b):
                        a.wait(lg=self.vtok[P])
                        for o in self.pv_ops(e, p, T, b, self.VF + 8 * (P & 1)):
                            a(o)
                    defer.append(pv)
            for f in defer:
                f()
            a.add_fill(self.att_out_ops(e))
            a.flush()

    def attention(self):
        a = self.a
        self.att_setup()
        if self.opt["fast"]:
            self.att_fast()
            a.add_fill(self.att_out_ops(1))
            a.flush()
            a("v_min3_f32 v0, v237, v239, v241")
            a("v_max3_f32 v1, v237, v239, v241")
            a("v_min_f32 v0, v0, v243")
            a("v_max_f32 v1, v1, v243")
            a(f"v_cmp_nle_f32 vcc, {fbits(2.0**-60)}, v0")
            a(f"v_mov_b32 v2, {fbits(2.0**24)}")
            a(f"v_cmp_nge_f32 {s(M2,2)}, v2, v1")
            a(f"s_or_b64 vcc, vcc, {s(M2,2)}")
            a("s_cbranch_vccnz L_true_max")
            a.label("L_att_done")
        else:
            a.wait_all(vm=False)
            self.att_true_max()
        a(f"s_lshl_b32 s{T1}, s{RB}, 4")
        a(f"s_add_u32 s{T1}, s{T1}, s{HP}")
        a(f"s_lshl_b32 s{T1}, s{T1}, 7")
        a(f"s_lshl_b32 s{T2}, s{W}, 2")
        a(f"s_add_u32 s{T1}, s{T1}, s{T2}")
        a(f"s_add_u32 s{T1}, s{T1}, {hex(FO)}")
        a.wait_all(lg=False)
        self.flag(T1, 235)
        a("s_setprio 0")
        self.stamp(7)

    def attention_fallback(self):
        a = self.a
        a.label("L_true_max")
        a.wait_all()
        self.att_true_max()
        a("s_branch L_att_done")

    def epoch_update(self):
        a = self.a
        L, D = a.new_label("ep"), a.new_label("epd")
        a(f"s_or_b32 s{T0}, s2, s{W}")
        a(f"s_cmp_lg_u32 s{T0}, 0")
        a(f"s_cbranch_scc1 {D}")
        st = a.state()
        a("v_mbcnt_lo_u32_b32 v40, -1, 0")
        a("v_mbcnt_hi_u32_b32 v40, -1, v40")
        a("v_lshrrev_b32 v41, 4, v40")
        a("v_and_b32 v40, 15, v40")
        a("v_lshlrev_b32 v40, 7, v40")
        a("v_lshl_add_u32 v40, v41, 12, v40")
        a(f"v_add_u32 v40, {hex(FH)}, v40")
        a(f"s_mov_b32 s{SPIN}, {hex(self.opt['spin'])}")
        a.label(L)
        for k in range(4):
            a(f"s_mov_b32 s{T0}, {k*4*4096}")
            a(f"buffer_load_dwordx4 {v(8*k,4)}, v40, {s(S_WS,4)}, s{T0} offen sc1")
            a(f"buffer_load_dwordx4 {v(8*k+4,4)}, v40, {s(S_WS,4)}, s{T0} offen offset:16 sc1")
        a("s_waitcnt vmcnt(0)")
        a(f"v_xor_b32 v0, s{TAG}, v0")
        for r in range(1, 32):
            a(f"v_xor_b32 v{r}, s{TAG}, v{r}")
            a(f"v_or_b32 v0, v0, v{r}")
        a("v_cmp_ne_u32 vcc, 0, v0")
        E = a.new_label("epw")
        a(f"s_cbranch_vccz {E}")
        a(f"s_sub_u32 s{SPIN}, s{SPIN}, 1")
        a(f"s_cbranch_scc0 {L}")
        self.fail(7, 41)
        a.label(E)
        a(f"s_mov_b32 s{T0}, 0")
        self.flag(T0, 41)
        a.set_state(st)
        a.label(D)

    WR, AR, DACC = 0, 100, 164
    VW, VW2, VA, FA, PD, LN = 244, 245, 246, 247, 248, 249

    def d_pstep(self, n):
        a = self.a
        if n < 8:
            a(f"s_lshl_b32 s{T2}, s{RG}, 3")
            a(f"s_add_u32 s{T2}, s{T2}, {n}")
        elif n < 14:
            a(f"s_add_u32 s{T2}, s{LCNT}, {n-8}")
        else:
            a(f"s_mul_i32 s{T2}, s{RG}, 5")
            a(f"s_add_u32 s{T2}, s{T2}, {54+n-14}")

    def d_base(self, n, dst, mul, base):
        a = self.a
        self.d_pstep(n)
        a(f"s_mul_i32 s{T2}, s{T2}, {mul}")
        a(f"s_add_u32 s{dst}, s{T2}, s{base}")
        if n == 13:
            a(f"s_cmp_lt_u32 s{RG}, 2")
            a(f"s_cselect_b32 s{dst}, s{dst}, {hex(OOB)}")

    def d_wload(self, n, ct):
        a = self.a
        b = self.WR + 20 * (n % 5) + 4 * ct
        if ct == 0:
            self.d_base(n, G0, 40960, SD_W)
        if ct < 4:
            a(f"buffer_load_dwordx4 {v(b,4)}, v{self.VW}, {s(S_WS,4)}, s{G0} offen offset:{ct*1024} sc1")
        else:
            a(f"buffer_load_dwordx4 {v(b,4)}, v{self.VW2}, {s(S_WS,4)}, s{G0} offen sc1")
            self.wtok[n] = a.vm_tok()

    def d_aload(self, n, T):
        a = self.a
        b = self.AR + 16 * (n % 4) + 4 * T
        if T == 0:
            self.d_base(n, G1, 8192, SD_A)
        a(f"buffer_load_dwordx4 {v(b,4)}, v{self.VA}, {s(S_WS,4)}, s{G1} offen offset:{T*256} sc1")
        if T == 3:
            self.atok[n] = a.vm_tok()

    def d_hflags(self, first, cntm1):
        a = self.a
        LN = self.LN
        a(f"v_lshrrev_b32 v250, 1, v{LN}")
        a(f"v_min_u32 v250, {cntm1}, v250")
        a(f"v_add_u32 v250, {first}, v250")
        a("v_lshrrev_b32 v251, 1, v250")
        a(f"s_lshl_b32 s{T2}, s{RBD}, 5")
        a(f"v_add_u32 v251, s{T2}, v251")
        a("v_lshlrev_b32 v251, 7, v251")
        a("v_and_b32 v250, 1, v250")
        a("v_lshl_add_u32 v251, v250, 4, v251")
        a(f"v_and_b32 v250, 1, v{LN}")
        a("v_lshl_add_u32 v251, v250, 2, v251")
        a(f"s_lshl_b32 s{T2}, s{HB}, 3")
        a(f"s_add_u32 s{T2}, s{T2}, {hex(FH)}")
        a(f"v_add_u32 v{self.FA}, s{T2}, v251")

    def d_pre(self):
        a = self.a
        d, LN = RG, self.LN
        a(f"v_mbcnt_lo_u32_b32 v{LN}, -1, 0")
        a(f"v_mbcnt_hi_u32_b32 v{LN}, -1, v{LN}")
        a(f"s_mul_i32 s{T0}, s{d}, 6")
        a(f"s_min_u32 s{T0}, s{T0}, 17")
        a(f"s_add_u32 s{LCNT}, s{T0}, 32")
        a(f"s_lshr_b32 s{T1}, s{d}, 1")
        a(f"s_sub_u32 s{T1}, 5, s{T1}")
        a(f"v_min_u32 v250, 37, v{LN}")
        a("v_lshrrev_b32 v251, 1, v250")
        a(f"s_lshl_b32 s{T2}, s{d}, 3")
        a(f"v_add_u32 v240, s{T2}, v251")
        a(f"v_subrev_u32 v241, 8, v251")
        a(f"v_min_u32 v241, s{T1}, v241")
        a(f"v_add_u32 v241, s{LCNT}, v241")
        a("v_cmp_lt_u32 vcc, 7, v251")
        a(f"s_mul_i32 s{T2}, s{d}, 5")
        a(f"s_add_u32 s{T2}, s{T2}, 40")
        a("v_cndmask_b32 v240, v240, v241, vcc")
        a(f"v_add_u32 v241, s{T2}, v251")
        a("v_cmp_lt_u32 vcc, 13, v251")
        a(f"s_mul_i32 s{T2}, s{CC}, 5")
        a(f"s_lshr_b32 s{T2}, s{T2}, 2")
        a("v_cndmask_b32 v240, v240, v241, vcc")
        a("v_and_b32 v250, 1, v250")
        a(f"v_add_u32 v250, s{T2}, v250")
        a("v_mul_u32_u24 v250, 74, v250")
        a("v_add_u32 v250, v250, v240")
        a("v_lshrrev_b32 v251, 3, v250")
        a("v_and_b32 v250, 7, v250")
        a("v_lshlrev_b32 v250, 2, v250")
        a("v_lshl_add_u32 v250, v251, 7, v250")
        a(f"v_add_u32 v{self.FA}, {hex(FP)}, v250")
        tok = self.poll_issue(self.FA, self.PD)
        a(f"v_lshlrev_b32 v{self.VW}, 4, v{LN}")
        a(f"v_add_u32 v{self.VW2}, 0x1000, v{self.VW}")
        a(f"v_lshrrev_b32 v250, 4, v{LN}")
        a(f"v_and_b32 v251, 15, v{LN}")
        a(f"v_lshlrev_b32 v251, 4, v251")
        a(f"v_lshl_add_u32 v{self.VA}, v250, 11, v251")
        a(f"s_mul_i32 s{SD_W}, s{CC}, 5120")
        a(f"s_add_u32 s{SD_W}, s{SD_W}, {hex(WP)}")
        a(f"s_mul_i32 s{SD_A}, s{RBD}, {296*2048}")
        a(f"s_lshl_b32 s{T2}, s{HB}, 10")
        a(f"s_add_u32 s{SD_A}, s{SD_A}, s{T2}")
        a(f"s_add_u32 s{SD_A}, s{SD_A}, {hex(ACT)}")
        return tok

    def d_pre2_ops(self, tok):
        a = self.a
        self.wtok, self.atok = {}, {}
        ops = [lambda: self.poll_check(tok, self.FA, self.PD, 3) or 1]
        for n in range(5):
            for ct in range(5):
                ops.append(lambda n=n, ct=ct: self.d_wload(n, ct) or 1)
        ops.append(lambda: (a(f"s_lshl_b32 s{T0}, s{RG}, 3"), self.d_hflags(f"s{T0}", "7")) and 1)
        return ops

    def dstage(self):
        a = self.a
        d, LN = RG, self.LN
        self.poll(self.FA, self.PD, 4)
        for n in range(3):
            for T in range(4):
                self.d_aload(n, T)
        self.flag(self.hb_flag, self.PD)
        self.stamp(6)
        for n in range(19):
            a.wait(vm=max(self.wtok[n], self.atok[n]))
            wb, ab = self.WR + 20 * (n % 5), self.AR + 16 * (n % 4)
            na = n + 3 if (n + 3 < 14 or n == 15) else None
            for ct in range(5):
                for T in range(4):
                    acc = self.DACC + (T * 5 + ct) * 4
                    c = "0" if n == 0 else v(acc, 4)
                    a(f"v_mfma_f32_16x16x32_bf16 {v(acc,4)}, {v(wb+4*ct,4)}, {v(ab+4*T,4)}, {c}")
                    if T == 1 and na is not None and ct < 4:
                        self.d_aload(na, ct)
                if n + 5 < 19:
                    self.d_wload(n + 5, ct)
            if n == 4:
                a(f"s_lshr_b32 s{T1}, s{d}, 1")
                a(f"s_sub_u32 s{T1}, 5, s{T1}")
                self.d_hflags(f"s{LCNT}", f"s{T1}")
                self.poll(self.FA, self.PD, 5)
            if n == 13:
                self.stamp(7)
                a(f"v_lshrrev_b32 v250, 1, v{LN}")
                a("v_and_b32 v250, 3, v250")
                a(f"s_lshl_b32 s{T2}, s{RBD}, 2")
                a(f"s_add_u32 s{T2}, s{T2}, s{d}")
                a(f"s_lshl_b32 s{T2}, s{T2}, 9")
                a(f"s_lshl_b32 s{T3}, s{HB}, 3")
                a(f"s_add_u32 s{T2}, s{T2}, s{T3}")
                a(f"s_add_u32 s{T2}, s{T2}, {hex(FO)}")
                a(f"v_lshl_add_u32 v251, v250, 7, s{T2}")
                a(f"v_and_b32 v250, 1, v{LN}")
                a(f"v_lshl_add_u32 v{self.FA}, v250, 2, v251")
                tok = self.poll_issue(self.FA, self.PD)
                self.final_addr(self.AR)
                self.poll_check(tok, self.FA, self.PD, 6)
                self.stamp(8)
                for k in range(14, 18):
                    for T in range(4):
                        self.d_aload(k, T)
            if n == 14:
                self.final_x()

    FL, FG, FX = (244, 245, 250), (251, 252, 253), 80

    def final_addr(self, t):
        a = self.a
        a(f"v_mbcnt_lo_u32_b32 v{t}, -1, 0")
        a(f"v_mbcnt_hi_u32_b32 v{t}, -1, v{t}")
        a(f"s_lshl_b32 s{T0}, s{HH}, 6")
        a(f"s_lshl_b32 s{T1}, s{W}, 3")
        a(f"s_add_u32 s{T0}, s{T0}, s{T1}")
        a(f"s_mul_i32 s{T0}, s{T0}, 1280")
        a(f"s_mul_i32 s{T2}, s{CC}, 160")
        a(f"s_add_u32 s{T0}, s{T0}, s{T2}")
        a(f"s_mul_i32 s{T1}, s{T1}, {RSTR}")
        for i in range(3):
            l, g = self.FL[i], self.FG[i]
            a(f"v_add_u32 v{t+1}, {64*i}, v{t}")
            a(f"v_mul_u32_u24 v{t+2}, 0xccd, v{t+1}")
            a(f"v_lshrrev_b32 v{t+2}, 16, v{t+2}")
            a(f"v_mul_u32_u24 v{t+3}, 20, v{t+2}")
            a(f"v_sub_u32 v{t+3}, v{t+1}, v{t+3}")
            a(f"v_mul_u32_u24 v{l}, {RSTR}, v{t+2}")
            a(f"v_lshl_add_u32 v{l}, v{t+3}, 4, v{l}")
            a(f"v_add_u32 v{l}, s{T1}, v{l}")
            a(f"v_mul_u32_u24 v{g}, 0x500, v{t+2}")
            a(f"v_lshl_add_u32 v{g}, v{t+3}, 3, v{g}")
            a(f"v_add_u32 v{g}, s{T0}, v{g}")
            if i == 2:
                a(f"v_cmp_gt_u32 vcc, 32, v{t}")
                a(f"v_mov_b32 v{t+2}, {hex(OOB)}")
                a(f"v_cndmask_b32 v{g}, v{t+2}, v{g}, vcc")
                a(f"v_cndmask_b32 v{l}, 0, v{l}, vcc")

    def final_x(self):
        for i in range(3):
            self.a(f"buffer_load_dwordx2 {v(self.FX+2*i,2)}, v{self.FG[i]}, {s(S_X,4)}, 0 offen")

    def red_write(self):
        a = self.a
        a(f"v_and_b32 v0, 15, v{self.LN}")
        a(f"v_mul_u32_u24 v0, {RSTR}, v0")
        a(f"v_lshrrev_b32 v1, 4, v{self.LN}")
        a("v_lshl_add_u32 v0, v1, 4, v0")
        a(f"s_mul_i32 s{T0}, s{RG}, {RSZ}")
        a(f"v_add_u32 v0, s{T0}, v0")
        a("s_barrier")
        for ct in range(5):
            for T in range(4):
                a(f"ds_write_b128 v0, {v(self.DACC+(T*5+ct)*4,4)} offset:{T*16*RSTR+ct*64}")
        a.wait_all(vm=False)

    def final(self):
        a = self.a
        a("s_barrier")
        self.stamp(9)
        for i in range(3):
            for dd in range(4):
                a(f"ds_read_b128 {v(16*i+4*dd,4)}, v{self.FL[i]} offset:{dd*RSZ}")
        a("s_waitcnt vmcnt(0)")
        base = a.lg_tok() - 12
        for i in range(3):
            x = self.FX + 2 * i
            a(f"v_lshlrev_b32 v48, 16, v{x}")
            a(f"v_and_b32 v49, 0xffff0000, v{x}")
            a(f"v_lshlrev_b32 v50, 16, v{x+1}")
            a(f"v_and_b32 v51, 0xffff0000, v{x+1}")
            a.wait(lg=base + 4 * (i + 1))
            r0 = 16 * i
            for r in range(4):
                a(f"v_add_f32 v{r0+r}, v{r0+r}, v{r0+4+r}")
            for r in range(4):
                a(f"v_add_f32 v{r0+8+r}, v{r0+8+r}, v{r0+12+r}")
            for r in range(4):
                a(f"v_add_f32 v{r0+r}, v{r0+r}, v{48+r}")
            for r in range(4):
                a(f"v_add_f32 v{r0+r}, v{r0+r}, v{r0+8+r}")
            a(f"v_cvt_pk_bf16_f32 v{r0}, v{r0}, v{r0+1}")
            a(f"v_cvt_pk_bf16_f32 v{r0+1}, v{r0+2}, v{r0+3}")
            a(f"buffer_store_dwordx2 {v(r0,2)}, v{self.FG[i]}, {s(S_OUT,4)}, 0 offen {self.opt['outsc']}")

    def diag_out(self):
        if not self.diag:
            return
        a = self.a
        a("s_waitcnt vmcnt(0)")
        self.stamp(10)
        a(f"s_lshl_b32 s{T0}, s2, 3")
        a(f"s_add_u32 s{T0}, s{T0}, s{W}")
        a(f"s_lshl_b32 s{T0}, s{T0}, 6")
        a(f"s_add_u32 s{T0}, s{T0}, {hex(DIAG)}")
        for i in range(10):
            a(f"v_mov_b32 v60, s{STAMP+i}")
            a(f"buffer_store_dword v60, v254, {s(S_WS,4)}, s{T0} offen offset:{4*i}")
        a(f"v_mov_b32 v60, s100")
        a(f"buffer_store_dword v60, v254, {s(S_WS,4)}, s{T0} offen offset:40")

    def build(self):
        a = self.a
        self.prologue()
        n0 = len(a.ins)
        self.gemm_common()
        x = self.opt.get("exp", "")
        if x:
            keep = []
            for i in a.ins[n0:]:
                if "m" in x and i.kind == "mfma": continue
                if "d" in x and i.lds_dma: continue
                if "r" in x and i.op.startswith("ds_read"): continue
                if "b" in x and i.op == "s_barrier": continue
                if "x" in x and i.op == "ds_read_b128": continue
                if "v" in x and i.op == "v_xor_b32": continue
                if "s" in x and i.kind == "salu" and ("s", 126) not in i.wr and ("s", 127) not in i.wr and "mem" not in i.op and ("s", 100) not in i.rd: continue
                if "w" in x and i.op == "s_waitcnt" and "lgkmcnt(0)" not in i.text and "vmcnt" not in i.text: continue
                keep.append(i)
            a.ins[n0:] = keep
        if self.opt.get("p1only"):
            for i in range(3, 10):
                self.stamp(i)
            self.diag_out()
            a.label("L_end")
            a("s_endpgm")
            return a.text()
        assert not x
        LT3, LATT, LD4, LD3, LD, LFIN = "L_three", "L_att", "L_d4", "L_d3", "L_d", "L_final"
        a(f"s_cmp_ge_u32 s{CG}, 11")
        a(f"s_cbranch_scc1 {LT3}")
        st = a.state()
        rt = dict(self.rtok)
        ab = self.after_barrier
        ab[120] = lambda: self.stamp(4)
        ab[128] = lambda: a.add_fill(self.silu_scale_ops() + self.e2_ops(208, CS2A, SHA, 176, "tok_h"))
        self.reads_after(116, 159)
        hooks = {119: lambda: self.cs2_write(CS2A), self.opt["gpoll"]: self.gather_setup, self.opt["gdma"]: self.gather_go}
        self.stream(117, 159, 159, hooks, lambda n: 3)
        a.flush()
        self.cs2_write(CS2B)
        self.ev_mfma(159, 0)
        a.wait(vm=self.tok_h)
        self.flag(FHA, 255)
        a(f"s_mov_b32 s{FHA}, s{FHB}")
        a.wait(vm=self.tok_g, lg=self.tok_csw)
        a("s_barrier")
        self.stamp(5)
        a(f"s_cmp_ge_u32 s{W}, 4")
        a(f"s_cbranch_scc1 {LD4}")
        st4 = a.state()
        a.add_fill(self.e2_ops(160, CS2B, SHB, 176, "tok_hb"))
        a.flush()
        a(f"s_branch {LATT}")
        a.label(LD4)
        a.set_state(st4)
        tok = self.d_pre()
        e2 = self.e2_ops(160, CS2B, SHB, 176, "tok_hb")
        pre2 = self.d_pre2_ops(tok)
        a.add_fill(e2[:30])
        k = 30
        for o in pre2:
            a.add_fill([o] + e2[k:k + 3])
            k += 3
        a.add_fill(e2[k:])
        a.flush()
        a(f"s_branch {LD}")
        a.label(LT3)
        a("s_nop 1")
        a.set_state(st)
        self.rtok = rt
        for n in (117, 118):
            self.ev_mfma(n, 0)
        self.cs2_write(CS2A)
        self.ev_mfma(119, 0)
        self.pack_jobs()
        a.wait(lg=a.lg_tok())
        a("s_barrier")
        self.stamp(4)
        self.gather_setup()
        a.add_fill(self.silu_scale_ops() + self.e2_ops(208, CS2A, SHA, 176, "tok_h"))
        a.fill(60)
        a.wait(vm=self.tok_p)
        self.flag(PKF0, 255)
        self.flag(PKF1, 255)
        a.flush()
        self.gather_go()
        a.flush()
        a.wait(vm=self.tok_h)
        self.flag(FHA, 255)
        a(f"s_mov_b32 s{FHA}, {hex(OOB)}")
        a.wait(vm=self.tok_g)
        a("s_barrier")
        self.stamp(5)
        a(f"s_cmp_lt_u32 s{W}, 4")
        a(f"s_cbranch_scc1 {LATT}")
        tok = self.d_pre()
        a.add_fill(self.d_pre2_ops(tok))
        a.flush()
        a.label(LD)
        self.hb_flag = FHA
        self.dstage()
        self.red_write()
        a(f"s_branch {LFIN}")
        a.label(LATT)
        a("s_nop 1")
        a.vm += 2
        a.lg_done = a.lg
        self.tok_hb = a.vm
        self.stamp(6)
        self.attention()
        self.final_addr(100)
        self.final_x()
        self.epoch_update()
        a("s_barrier")
        a.label(LFIN)
        a.lg_done = a.lg
        self.final()
        self.diag_out()
        a.label("L_end")
        a("s_endpgm")
        if self.opt["fast"]:
            self.attention_fallback()
        return a.text()


HEADER = """; Fused LayerNorm + QKV + sliding-window attention + SiLU FFN + output projection, one persistent launch.
; @launch grid=(256,1,1) block=(512,1,1) lds={lds}
.amdgcn_target "amdgcn-amd-amdhsa--gfx950"
.text
.globl {name}_kernel
.p2align 8
.type {name}_kernel,@function
{name}_kernel:
"""
FOOTER = """.section .rodata,"a"
.p2align 6
.amdhsa_kernel {name}_kernel
  .amdhsa_next_free_vgpr 256
  .amdhsa_next_free_sgpr 102
  .amdhsa_accum_offset 256
  .amdhsa_group_segment_fixed_size 0
  .amdhsa_kernarg_size 72
  .amdhsa_user_sgpr_count 2
  .amdhsa_user_sgpr_kernarg_segment_ptr 1
  .amdhsa_system_sgpr_workgroup_id_x 1
.end_amdhsa_kernel
"""


def generate(**kw):
    g = Gen(**kw)
    body = g.build()
    return HEADER.format(name=NAME, lds=LDS_BYTES) + body + FOOTER.format(name=NAME), g


if __name__ == "__main__":
    import argparse
    ap = argparse.ArgumentParser()
    ap.add_argument("-o", default=f"cdna_kernels/{NAME}.s")
    ap.add_argument("--diag", type=int, default=0)
    ap.add_argument("--rot", type=int, default=1)
    ap.add_argument("--opt", nargs="*", default=[])
    args = ap.parse_args()
    opt = {}
    for kv in args.opt:
        k, val = kv.split("=")
        opt[k] = int(val) if val.lstrip("-").isdigit() else val
    text, g = generate(diag=args.diag, rotmode=args.rot, **opt)
    open(args.o, "w").write(text)
    print(args.o, len(text), "bytes,", len(g.a.ins), "instructions,", g.a.nops_added, "nops added")
```
